```python
import torch

def _softmax(x, axis=-1):
    return torch.softmax(x, dim=axis)
def _gelu(x):
    return torch.nn.functional.gelu(x, approximate="tanh")
def _silu(x):
    return torch.nn.functional.silu(x)
def _sigmoid(x):
    return torch.sigmoid(x)
def _layernorm(x, axis=-1, eps=1e-5):
    m = x.mean(dim=axis, keepdim=True)
    v = x.var(dim=axis, keepdim=True, unbiased=False)
    return (x - m) / torch.sqrt(v + eps)
def _scatter_add(tgt, idx, src, axis=0):
    return tgt.clone().index_add_(axis, idx, src)
def _segment_sum(src, seg, n):
    out = torch.zeros((n,) + src.shape[1:], dtype=src.dtype)
    return out.index_add_(0, seg, src)
def _pad(x, pw):
    flat = tuple(v for pair in reversed(pw) for v in pair)
    return torch.nn.functional.pad(x, flat)

kernel_name = 'concat_heads__mha_block_cached__mha_block_cached__near_ridge'

def setup_inputs():

    _w = (lambda a: (lambda t: t.to(torch.bfloat16) if t.is_floating_point() else t)(torch.as_tensor(a)))
    def _A_setup():
        B, Sq, D = 16, 64, 448
        H, Sk, Dh = 16, 64, 256
        return {
            "x": _w((lambda *s: torch.randn(*s, dtype=torch.bfloat16) * 0.8)(B, Sq, D)),
            "k_cache": _w((lambda *s: torch.randn(*s, dtype=torch.bfloat16) * 0.8)(B, H, Sk, Dh)),
            "v_cache": _w((lambda *s: torch.randn(*s, dtype=torch.bfloat16) * 0.05)(B, H, Sk, Dh)),
            "wq": _w((lambda *s: torch.randn(*s, dtype=torch.bfloat16) * 0.8)(D, H * Dh) * (D ** -0.5)),
            "wo": _w((lambda *s: torch.randn(*s, dtype=torch.bfloat16) * 0.05)(H * Dh, D) * ((H * Dh) ** -0.5)),
        }
    _A_in = _A_setup()

    def _B_setup():
        B, Sq, D = 16, 64, 448
        H, Sk, Dh = 16, 64, 256
        return {
            "x": _w((lambda *s: torch.randn(*s, dtype=torch.bfloat16) * 0.8)(B, Sq, D)),
            "k_cache": _w((lambda *s: torch.randn(*s, dtype=torch.bfloat16) * 0.8)(B, H, Sk, Dh)),
            "v_cache": _w((lambda *s: torch.randn(*s, dtype=torch.bfloat16) * 0.05)(B, H, Sk, Dh)),
            "wq": _w((lambda *s: torch.randn(*s, dtype=torch.bfloat16) * 0.8)(D, H * Dh) * (D ** -0.5)),
            "wo": _w((lambda *s: torch.randn(*s, dtype=torch.bfloat16) * 0.05)(H * Dh, D) * ((H * Dh) ** -0.5)),
        }
    _B_in = _B_setup()

    return {
        "A_x": _A_in["x"],
        "A_k_cache": _A_in["k_cache"],
        "A_v_cache": _A_in["v_cache"],
        "A_wq": _A_in["wq"],
        "A_wo": _A_in["wo"],
        "B_x": _B_in["x"],
        "B_k_cache": _B_in["k_cache"],
        "B_v_cache": _B_in["v_cache"],
        "B_wq": _B_in["wq"],
        "B_wo": _B_in["wo"],
    }

def reference(A_x, A_k_cache, A_v_cache, A_wq, A_wo, B_x, B_k_cache, B_v_cache, B_wq, B_wo):
    def _A_ref(x, k_cache, v_cache, wq, wo):
        B, Sq, D = x.shape
        H, Dh = 16, 256
        q = (lambda x, *d: x.permute(*d))((x @ wq).reshape(B, Sq, H, Dh), 0, 2, 1, 3)
        scores = torch.einsum("bhqd,bhkd->bhqk", q, k_cache) * (Dh ** -0.5)
        p = _softmax(scores, axis=-1)
        o = torch.einsum("bhqk,bhkd->bhqd", p, v_cache)
        return (lambda x, *d: x.permute(*d))(o, 0, 2, 1, 3).reshape(B, Sq, H * Dh) @ wo

    def _B_ref(x, k_cache, v_cache, wq, wo):
        B, Sq, D = x.shape
        H, Dh = 16, 256
        q = (lambda x, *d: x.permute(*d))((x @ wq).reshape(B, Sq, H, Dh), 0, 2, 1, 3)
        scores = torch.einsum("bhqd,bhkd->bhqk", q, k_cache) * (Dh ** -0.5)
        p = _softmax(scores, axis=-1)
        o = torch.einsum("bhqk,bhkd->bhqd", p, v_cache)
        return (lambda x, *d: x.permute(*d))(o, 0, 2, 1, 3).reshape(B, Sq, H * Dh) @ wo

    a = _A_ref(A_x, A_k_cache, A_v_cache, A_wq, A_wo)
    b = _B_ref(B_x, B_k_cache, B_v_cache, B_wq, B_wo)
    return torch.concatenate([a, b], axis=-1)
```

```python
import sys
NAME = "concat_heads__mha_block_cached__mha_block_cached__near_ridge"
opts = dict(fused=0, stamps=0, nt_kv=1, delay_kv=0, pf=1, pf_at=12, noread=0, nomfma=0, noprio=0, nokv=0, nt_pf=1, nt_ring=0, nt_x=1, m_pre=4, m_post=2, m_rate=110, wo_pos=32, wo_fl=0, wo_full=0, onoread=0, onomfma=0, onoload=0, nt_ringo=0)
for a in sys.argv[2:]:
    k, v = a.split("="); opts[k] = int(v)
L = []
def e(s): L.append("    " + s)
def lab(s): L.append(s + ":")
def c(s): L.append("    ; " + s)
def vr(a, n): return f"v[{a}:{a+n-1}]"

RING_Q = 0; NSQ = 5; XR = 81920; KR = 98304; VR = 0; RING_O = 65536; NSO = 6; EX = 0
S_WAVE = 3
SX, SK, SV, SWQ, SWO, SWS, SDBG, SOUT = 32, 36, 40, 44, 48, 52, 56, 60
S_BR, S_B, S_HP, S_PAIR = 64, 65, 66, 67
S_T0, S_T1, S_T2, S_T3 = 68, 69, 70, 71
S_SLOT, S_CNT, S_SOFF, S_C = 72, 73, 74, 75
def srd(n): return f"s[{n}:{n+3}]"

class VM:
    def __init__(s): s.ops = []
    def add(s, tag): s.ops.append(tag)
    def wait(s, tags):
        idx = max([i for i, t in enumerate(s.ops) if t in tags], default=-1)
        n = len(s.ops) - 1 - idx
        assert n <= 63
        if idx >= 0:
            e(f"s_waitcnt vmcnt({n})")
            s.ops = s.ops[idx+1:]

def stamp(i):
    if opts["stamps"]:
        e(f"s_memtime s[{80+2*i}:{81+2*i}]")

def make_srd(n, plo, add_lo, nrec):
    e(f"s_add_u32 s{n}, s{plo}, s{add_lo}")
    e(f"s_addc_u32 s{n+1}, s{plo+1}, 0")
    e(f"s_and_b32 s{n+1}, s{n+1}, 0xffff")
    if isinstance(nrec, int): e(f"s_mov_b32 s{n+2}, {nrec}")
    else: e(f"s_mov_b32 s{n+2}, {nrec}")
    e(f"s_mov_b32 s{n+3}, 0x20000")

def decode_wg():
    e("s_and_b32 s68, s2, 7")
    e("s_lshr_b32 s69, s2, 3")
    e(f"s_lshr_b32 s{S_BR}, s68, 2")
    e(f"s_and_b32 s{S_PAIR}, s69, 1")
    e(f"s_lshr_b32 s{S_B}, s69, 1")
    e("s_and_b32 s68, s68, 3")
    e("s_lshl_b32 s68, s68, 1")
    e(f"s_add_u32 s{S_HP}, s68, s{S_PAIR}")

def main_kernel():
    lab("main_kernel")
    e("s_cmp_ge_u32 s2, 256")
    e("s_cbranch_scc1 L_end")
    e("s_load_dwordx16 s[4:19], s[0:1], 0")
    e("s_load_dwordx8 s[20:27], s[0:1], 64")
    e("s_load_dwordx2 s[28:29], s[0:1], 96")
    stamp(0)
    e("v_lshrrev_b32 v1, 6, v0")
    e("v_and_b32 v0, 63, v0")
    e("s_nop 0")
    e(f"v_readfirstlane_b32 s{S_WAVE}, v1")
    decode_wg()
    e("s_waitcnt lgkmcnt(0)")
    e(f"s_cmp_eq_u32 s{S_BR}, 0")
    e("s_cselect_b64 s[4:5], s[4:5], s[14:15]")
    e("s_cselect_b64 s[6:7], s[6:7], s[16:17]")
    e("s_cselect_b64 s[8:9], s[8:9], s[18:19]")
    e("s_cselect_b64 s[10:11], s[10:11], s[20:21]")
    e("s_cselect_b64 s[12:13], s[12:13], s[22:23]")
    e(f"s_mul_i32 s68, s{S_B}, 57344"); make_srd(SX, 4, 68, 57344)
    e(f"s_lshl_b32 s68, s{S_B}, 19"); e(f"s_lshl_b32 s69, s{S_HP}, 16"); e("s_add_u32 s68, s68, s69")
    make_srd(SK, 6, 68, 65536); make_srd(SV, 8, 68, 65536)
    e(f"s_lshl_b32 s68, s{S_HP}, 10"); e("s_sub_u32 s69, 3670016, s68"); make_srd(SWQ, 10, 68, "s69")
    e(f"s_mul_i32 s68, s{S_HP}, 458752"); make_srd(SWO, 12, 68, 458752)
    e(f"s_lshl_b32 s68, s{S_BR}, 4"); e(f"s_add_u32 s68, s68, s{S_B}"); e("s_lshl_b32 s68, s68, 3")
    e(f"s_add_u32 s68, s68, s{S_HP}"); e("s_mul_i32 s68, s68, 57344"); make_srd(SWS, 28, 68, 57344)
    e(f"s_cmp_lt_u32 s{S_WAVE}, 4"); e("s_cbranch_scc1 L_compute")
    loader()
    lab("L_compute")
    compute()
    lab("L_end")
    e("s_endpgm")

MF = "v_mfma_f32_32x32x16_bf16"
def compute():
    c("================= compute waves 0..3 =================")
    ACC = 0; AF = 128; XF = 192; AQB = 200; AQC = 204; AX = 208; AXT = 209; DUM = 210
    AK = 240; AV = 241; AO = 245; AOC = 246; AEW = 247; AER = 248; AST = 249; T0 = 250; T1 = 251; T2 = 252; T3 = 253; T4 = 254
    if not opts["noprio"]: e("s_setprio 1")
    S_HH, S_QH = 76, 77
    e(f"s_lshr_b32 s{S_HH}, s{S_WAVE}, 1"); e(f"s_and_b32 s{S_QH}, s{S_WAVE}, 1")
    c("lane decomposition: G=l>>4 r=(l>>2)&3 cc=l&3")
    e(f"v_bfe_u32 v1, v0, 2, 2")
    e(f"v_lshrrev_b32 v2, 5, v0")
    e(f"v_bfe_u32 v3, v0, 4, 1")
    e(f"v_and_b32 v4, 1, v0")
    e(f"v_bfe_u32 v5, v0, 1, 1")
    e(f"v_and_b32 v6, 31, v0")
    e("v_lshlrev_b32 v7, 13, v2"); e("v_lshl_add_u32 v7, v1, 10, v7")
    e("v_lshl_add_u32 v7, v3, 5, v7"); e("v_lshl_add_u32 v7, v4, 4, v7"); e("v_lshl_add_u32 v7, v5, 3, v7")
    e(f"s_lshl_b32 s68, s{S_HH}, 9"); e("v_add_u32 v7, s68, v7")
    for d in range(4):
        e(f"v_xor_b32 v8, {d}, v1"); e(f"v_lshl_add_u32 v{AQB+d}, v8, 6, v7")
    e("v_bfe_u32 v8, v0, 1, 3"); e("v_xor_b32 v8, v8, v2"); e("v_lshlrev_b32 v8, 4, v8"); e("v_lshl_add_u32 v8, v6, 7, v8")
    e(f"s_lshl_b32 s68, s{S_QH}, 12"); e(f"s_add_u32 s68, s68, {XR}"); e(f"v_add_u32 v{AX}, s68, v8")
    e("v_and_b32 v8, 15, v0"); e("v_xor_b32 v8, v8, v2"); e("v_lshlrev_b32 v8, 4, v8"); e("v_lshl_add_u32 v8, v6, 9, v8")
    e(f"s_lshl_b32 s69, s{S_HH}, 15"); e(f"s_add_u32 s68, s69, {KR}"); e(f"v_add_u32 v{AK}, s68, v8")
    e("v_lshlrev_b32 v7, 11, v2"); e("v_lshl_add_u32 v7, v1, 9, v7"); e("v_lshl_add_u32 v7, v3, 5, v7")
    e("v_and_b32 v8, 3, v0"); e("v_lshl_add_u32 v7, v8, 3, v7"); e("v_add_u32 v7, s69, v7")
    for d in range(4):
        e(f"v_xor_b32 v8, {d}, v1"); e(f"v_lshl_add_u32 v{AV+d}, v8, 6, v7")
    e("v_lshl_add_u32 v7, v2, 2, v1"); e("v_mul_u32_u24 v7, 448, v7")
    e("v_lshl_add_u32 v7, v4, 5, v7"); e("v_lshl_add_u32 v7, v3, 4, v7"); e("v_lshl_add_u32 v7, v5, 3, v7")
    e(f"s_mul_i32 s68, s{S_HH}, 7168"); e(f"s_add_u32 s68, s68, {RING_O}"); e(f"v_add_u32 v{AO}, s68, v7")
    e("v_lshlrev_b32 v7, 4, v0")
    e(f"s_lshl_b32 s68, s{S_WAVE}, 14"); e(f"v_add_u32 v{AEW}, s68, v7"); e(f"v_xor_b32 v{AER}, 0x8000, v{AEW}")
    e(f"s_mul_i32 s68, s{S_QH}, 14"); e(f"s_mul_i32 s69, s{S_HH}, 7"); e("s_add_u32 s68, s68, s69"); e("s_lshl_b32 s68, s68, 11")
    e(f"v_add_u32 v{AST}, s68, v7")
    c("zero Q accumulators")
    for i in range(128): e(f"v_mov_b32 v{i}, 0")
    def q_reads(buf, piece):
        r = [f"ds_read_b128 {vr(XF+4*buf,4)}, v{AXT}"]
        for dt in range(8):
            for u in range(2):
                r.append(f"ds_read_b64_tr_b16 {vr(AF+32*buf+4*dt+2*u,2)}, v{AQC+(dt&3)} offset:{u*4096+(dt>>2)*256}")
        return r
    e(f"s_mov_b32 s{S_SLOT}, 0")
    for d in range(4): e(f"v_mov_b32 v{AQC+d}, v{AQB+d}")
    e(f"v_mov_b32 v{AXT}, v{AX}")
    stamp(1)
    e("s_barrier ; B0")
    stamp(2)
    for r in q_reads(0, 0): e(r)
    e(f"s_mov_b32 s{S_CNT}, 7")
    lab("L_qloop")
    for p in range(4):
        cur = p & 1; nxt = cur ^ 1
        m = [f"{MF} {vr(16*dt,16)}, {vr(AF+32*cur+4*dt,4)}, {vr(XF+4*cur,4)}, {vr(16*dt,16)}" for dt in range(8)]
        rd = q_reads(nxt, (p+1) & 3)
        e("s_waitcnt lgkmcnt(14)")
        e(m[0])
        e(f"s_add_u32 s{S_SLOT}, s{S_SLOT}, 16384"); e(f"s_cmp_eq_u32 s{S_SLOT}, {NSQ*16384}"); e(f"s_cselect_b32 s{S_SLOT}, 0, s{S_SLOT}")
        if p == 3: e(f"v_xor_b32 v{AX}, 0x2000, v{AX}")
        e(f"v_xor_b32 v{AXT}, {((p+1)&3)<<5}, v{AX}")
        for d in range(4): e(f"v_add_u32 v{AQC+d}, s{S_SLOT}, v{AQB+d}")
        e("s_waitcnt lgkmcnt(0)"); e("s_barrier")
        k = 0
        if opts["noread"]: rd = []
        for j in range(1, 8):
            for _ in range(3):
                if k < len(rd): e(rd[k]); k += 1
            if not opts["nomfma"]: e(m[j])
    e(f"s_sub_u32 s{S_CNT}, s{S_CNT}, 1"); e(f"s_cmp_lg_u32 s{S_CNT}, 0"); e("s_cbranch_scc1 L_qloop")
    stamp(3)
    c("---- S^T = K Q^T")
    QP = 128; KF = 192; SA = 208
    e("s_waitcnt lgkmcnt(0)")
    def k_read(dt, s, kt):
        x = 2*dt + s
        return f"ds_read_b128 {vr(KF+4*(2*s+kt),4)}, v{T0+(x&1)} offset:{kt*16384+(x>>3)*256}"
    def k_addr(dt, s):
        x = 2*dt + s
        return f"v_xor_b32 v{T0+(x&1)}, {(x&7)<<5}, v{AK}"
    def cvt_tile(src, dst):
        return [f"v_cvt_pk_bf16_f32 v{dst+i}, v{src+2*i}, v{src+2*i+1}" for i in range(8)]
    for s in range(2):
        e(k_addr(0, s))
        for kt in range(2): e(k_read(0, s, kt))
    for x in cvt_tile(0, QP): e(x)
    e("s_nop 1")
    for dt in range(8):
        cv = cvt_tile(16*(dt+1), QP+8*(dt+1)) if dt < 7 else []
        for s in range(2):
            for kt in range(2):
                e("s_waitcnt lgkmcnt(3)" if dt < 7 else f"s_waitcnt lgkmcnt({3-(2*s+kt)})")
                cin = "0" if (dt == 0 and s == 0) else vr(SA+16*kt, 16)
                e(f"{MF} {vr(SA+16*kt,16)}, {vr(KF+4*(2*s+kt),4)}, {vr(QP+8*dt+4*s,4)}, {cin}")
                if dt < 7:
                    if kt == 0: e(k_addr(dt+1, s))
                    e(k_read(dt+1, s, kt))
                for _ in range(2):
                    if cv: e(cv.pop(0))
        if dt < 7: e("s_nop 0")
    stamp(4)
    c("---- softmax over keys (32 in-lane values + partner half)")
    PP = 192
    e("s_nop 7"); e("s_nop 3")
    e(f"v_max3_f32 v{T0}, v{SA}, v{SA+1}, v{SA+2}")
    e(f"v_max3_f32 v{T1}, v{SA+16}, v{SA+17}, v{SA+18}")
    for i in range(3, 15, 2):
        e(f"v_max3_f32 v{T0}, v{T0}, v{SA+i}, v{SA+i+1}")
        e(f"v_max3_f32 v{T1}, v{T1}, v{SA+16+i}, v{SA+16+i+1}")
    e(f"v_max3_f32 v{T0}, v{T0}, v{SA+15}, v{SA+31}")
    e(f"v_max_f32 v{T0}, v{T0}, v{T1}")
    e(f"v_mov_b32 v{T1}, v{T0}"); e("s_nop 1")
    e(f"v_permlane32_swap_b32 v{T0}, v{T1}"); e("s_nop 1")
    e(f"v_max_f32 v{T0}, v{T0}, v{T1}")
    e(f"s_mov_b32 s{S_C}, 0x3db8aa3b ; 0.0625*log2(e)")
    e(f"v_mul_f32 v{T0}, s{S_C}, v{T0}")
    for i in range(32): e(f"v_fma_f32 v{SA+i}, v{SA+i}, s{S_C}, -v{T0}")
    for i in range(32): e(f"v_exp_f32 v{SA+i}, v{SA+i}")
    e(f"v_add_f32 v{T0}, v{SA}, v{SA+1}"); e(f"v_add_f32 v{T1}, v{SA+2}, v{SA+3}")
    for i in range(4, 32, 2):
        e(f"v_add_f32 v{T0}, v{T0}, v{SA+i}"); e(f"v_add_f32 v{T1}, v{T1}, v{SA+i+1}")
    e(f"v_add_f32 v{T0}, v{T0}, v{T1}")
    e(f"v_mov_b32 v{T1}, v{T0}"); e("s_nop 1")
    e(f"v_permlane32_swap_b32 v{T0}, v{T1}"); e("s_nop 1")
    e(f"v_add_f32 v{T0}, v{T0}, v{T1}")
    e(f"v_rcp_f32 v{T0}, v{T0}"); e("s_nop 0")
    for i in range(32): e(f"v_mul_f32 v{SA+i}, v{SA+i}, v{T0}")
    for i in range(16): e(f"v_cvt_pk_bf16_f32 v{PP+i}, v{SA+2*i}, v{SA+2*i+1}")
    stamp(5)
    e("s_barrier")
    stamp(6)
    c("---- O^T = V^T P^T")
    VF = 208; OP = 128
    def v_reads(dt, ks):
        slot = (4*dt+ks) & 7
        return [f"ds_read_b64_tr_b16 {vr(VF+4*slot+2*u,2)}, v{AV+(dt&3)} offset:{(dt>>2)*256+(16*ks+8*u)*512}" for u in range(2)]
    seq = [(dt, ks) for dt in range(8) for ks in range(4)]
    PFD = 6
    for (dt, ks) in seq[:PFD]:
        for r in v_reads(dt, ks): e(r)
    for n, (dt, ks) in enumerate(seq):
        rem = min(PFD, len(seq) - n) - 1
        e(f"s_waitcnt lgkmcnt({2*rem})")
        cin = "0" if ks == 0 else vr(16*dt, 16)
        e(f"{MF} {vr(16*dt,16)}, {vr(VF+4*(n&7),4)}, {vr(PP+4*ks,4)}, {cin}")
        if n + PFD < len(seq):
            for r in v_reads(*seq[n+PFD]): e(r)
        if dt >= 2:
            cv = cvt_tile(16*(dt-2), OP+8*(dt-2))
            e(cv[2*ks]); e(cv[2*ks+1])
    for x in cvt_tile(16*6, OP+48): e(x)
    e("s_nop 7")
    for x in cvt_tile(16*7, OP+56): e(x)
    stamp(7)
    e("s_barrier")
    c("---- O exchange writes + out projection")
    def wf(buf, nt):
        if buf == 0: return 192 + 4*nt
        return 220 + 4*nt if nt < 5 else 112 + 4*(nt-5)
    def o_reads(buf):
        return [f"ds_read_b64_tr_b16 {vr(wf(buf,nt)+2*u,2)}, v{AOC} offset:{u*3584+nt*64}" for nt in range(7) for u in range(2)]
    e(f"v_mov_b32 v{AOC}, v{AO}")
    e(f"s_mov_b32 s{S_SLOT}, 0")
    for r in o_reads(0): e(r)
    for ks in range(16): e(f"ds_write_b128 v{AEW}, {vr(OP+4*ks,4)} offset:{ks*1024}")
    for i in range(112): e(f"v_mov_b32 v{i}, 0")
    e("s_waitcnt lgkmcnt(0)")
    e(f"s_mov_b32 s{S_CNT}, 2")
    lab("L_oloop")
    for p in range(16):
        cur = p & 1; nxt = cur ^ 1
        m = [f"{MF} {vr(16*nt,16)}, {vr(wf(cur,nt),4)}, {vr(OP+4*p,4)}, {vr(16*nt,16)}" for nt in range(7)]
        rd = o_reads(nxt)
        e("s_waitcnt lgkmcnt(13)")
        e(m[0])
        e(f"s_add_u32 s{S_SLOT}, s{S_SLOT}, 16384"); e(f"s_cmp_eq_u32 s{S_SLOT}, {NSO*16384}"); e(f"s_cselect_b32 s{S_SLOT}, 0, s{S_SLOT}")
        e(f"v_add_u32 v{AOC}, s{S_SLOT}, v{AO}")
        e("s_waitcnt lgkmcnt(0)"); e("s_barrier")
        k = 0
        if opts["onoread"]: rd = []
        for j in range(1, 7):
            for _ in range(3):
                if k < len(rd): e(rd[k]); k += 1
            if not opts["onomfma"]: e(m[j])
        e(f"ds_read_b128 {vr(OP+4*p,4)}, v{AER} offset:{p*1024}")
    e(f"s_sub_u32 s{S_CNT}, s{S_CNT}, 1"); e(f"s_cmp_lg_u32 s{S_CNT}, 0"); e("s_cbranch_scc1 L_oloop")
    stamp(8)
    c("---- partial out -> ws (bf16, lane-linear units)")
    e("s_waitcnt lgkmcnt(0)")
    e("s_nop 4")
    sc = " sc0 sc1" if opts["fused"] else ""
    for nt in range(7):
        d = 128 + 8*nt
        for x in cvt_tile(16*nt, d): e(x)
        e(f"s_mov_b32 s68, {nt*2048}")
        e(f"buffer_store_dwordx4 {vr(d,4)}, v{AST}, {srd(SWS)}, s68 offen{sc}")
        e(f"buffer_store_dwordx4 {vr(d+4,4)}, v{AST}, {srd(SWS)}, s68 offen offset:1024{sc}")
    if opts["stamps"]:
        e("s_waitcnt vmcnt(0)")
        stamp(9)
        e(f"s_cmp_lg_u32 s2, {opts['stamps']-1}"); e("s_cbranch_scc1 L_end")
        e(f"s_cmp_lg_u32 s{S_WAVE}, 0"); e("s_cbranch_scc1 L_end")
        e("s_waitcnt lgkmcnt(0)")
        e("s_mov_b32 s68, 0"); make_srd(SDBG, 26, 68, 256)
        e("v_mov_b32 v1, 0")
        for i in range(1, 10):
            e(f"s_sub_u32 s68, s{80+2*i}, s80"); e("v_mov_b32 v2, s68")
            e(f"buffer_store_dword v2, v1, {srd(SDBG)}, 0 offen offset:{4*i}")
    e("s_endpgm")

def loader():
    lab("L_loader")
    c("================= loader waves 4..7 =================")
    S_LW = 76
    VQ, VX, VO, VK, VL, VW, VPF, DUM, VD = 8, 12, 16, 20, 28, 29, 32, 36, 64
    ntk = " nt" if opts["nt_kv"] else ""; ntp = " nt" if opts["nt_pf"] else ""; ntr = " nt" if opts["nt_ring"] else ""
    ntx = " nt" if opts["nt_x"] else ""
    vm = VM()
    e(f"s_sub_u32 s{S_LW}, s{S_WAVE}, 4")
    c("L2 line prefetch: Wq row (16t+b), x half")
    e("v_lshrrev_b32 v1, 3, v0"); e("v_and_b32 v2, 7, v0"); e("v_lshlrev_b32 v2, 7, v2"); e(f"v_lshl_add_u32 v{VPF}, v1, 17, v2")
    e(f"s_lshl_b32 s68, s{S_LW}, 20"); e(f"s_lshl_b32 s69, s{S_B}, 13"); e("s_add_u32 s68, s68, s69")
    if opts["pf"]: e(f"buffer_load_dword v{DUM}, v{VPF}, {srd(SWQ)}, s68 offen{ntp}"); vm.add("pf")
    e("v_and_b32 v1, 31, v0"); e("v_mul_u32_u24 v1, 896, v1"); e("v_lshrrev_b32 v2, 5, v0"); e(f"v_lshl_add_u32 v{VPF+1}, v2, 7, v1")
    e(f"s_mul_i32 s68, s{S_PAIR}, 28672"); e(f"s_lshl_b32 s69, s{S_LW}, 8"); e("s_add_u32 s68, s68, s69")
    if opts["pf"]: e(f"buffer_load_dword v{DUM}, v{VPF+1}, {srd(SX)}, s68 offen{ntx}"); vm.add("pf")
    c("K dma patterns")
    S_KV = 77
    e("v_lshrrev_b32 v1, 5, v0"); e("v_and_b32 v2, 31, v0"); e("v_xor_b32 v3, v2, v1"); e("v_lshlrev_b32 v3, 4, v3")
    e("v_lshl_add_u32 v3, v1, 9, v3")
    for n in range(8): e(f"v_xor_b32 v{VK+n}, {(2*n)<<4}, v3")
    e(f"s_lshl_b32 s{S_KV}, s{S_LW}, 14")
    def k_load(n):
        e(f"s_add_u32 s{S_SOFF}, s{S_KV}, {n*1024}"); e(f"s_add_u32 m0, s{S_SOFF}, {KR}"); e("s_nop 0")
        e(f"buffer_load_dwordx4 v{VK+n%8}, {srd(SK)}, s{S_SOFF} offen{ntk} lds"); vm.add("k")
    def v_load(n):
        e(f"s_add_u32 s{S_SOFF}, s{S_KV}, {(n&~3)*1024}")
        e(f"buffer_load_dwordx4 {vr(VD+4*n,4)}, v{VL}, {srd(SV)}, s{S_SOFF} offen offset:{(n&3)*1024}{ntk}"); vm.add(("v", n))
    def wo_pf():
        e(f"s_mul_i32 s68, s{S_B}, 28672"); e(f"s_mul_i32 s69, s{S_LW}, 7168"); e("s_add_u32 s68, s68, s69")
        e(f"v_lshlrev_b32 v1, 7, v0")
        fl = ["", " nt", " sc0 nt", " nt sc1", " sc0 nt sc1", " sc0", " sc1"][opts["wo_fl"]]
        if opts["wo_full"]:
            for i in range(7):
                e(f"buffer_load_dwordx4 {vr(DUM,4)}, v{VL}, {srd(SWO)}, s68 offen{fl}"); vm.add("pf"); e("s_add_u32 s68, s68, 1024")
        else:
            e(f"buffer_load_dword v{DUM}, v1, {srd(SWO)}, s68 offen{fl}"); vm.add("pf")
    miss = [(k_load, n) for n in range(16)] + [(v_load, n) for n in range(16)]
    if opts["pf"]: miss.insert(int(opts["wo_pos"]), (lambda n: wo_pf(), 0))
    def do_miss(cnt):
        for _ in range(cnt):
            if miss: f, n = miss.pop(0); f(n)
    e(f"v_lshlrev_b32 v{VL}, 4, v0")
    do_miss(opts["m_pre"])
    for r in range(4):
        e(f"v_xor_b32 v1, {r<<2}, v0"); e(f"v_lshlrev_b32 v1, 4, v1"); e(f"v_add_u32 v{VQ+r}, {r*7168}, v1")
    e("v_lshrrev_b32 v2, 3, v0"); e("v_mul_u32_u24 v2, 896, v2"); e("v_and_b32 v3, 7, v0"); e("v_lshrrev_b32 v4, 4, v0")
    for n in range(2):
        e(f"v_add_u32 v5, {4*(n&1)}, v4"); e("v_xor_b32 v5, v5, v3"); e("v_lshl_add_u32 v5, v5, 4, v2")
        e(f"v_add_u32 v{VX+n}, {n*6144}, v5")
    S_QB, S_XB, S_LQ, S_LX, S_OB, S_LO = 78, 79, 30, 31, 62, 63
    e(f"s_lshl_b32 s{S_QB}, s{S_LW}, 15")
    e(f"s_lshl_b32 s{S_LQ}, s{S_LW}, 12")
    e(f"s_mul_i32 s{S_XB}, s{S_LW}, 14336")
    e(f"s_lshl_b32 s{S_LX}, s{S_LW}, 11"); e(f"s_add_u32 s{S_LX}, s{S_LX}, {XR}")
    def q_stage(t):
        e(f"s_add_u32 m0, s{S_LQ}, {(t%NSQ)*16384}")
        e(f"s_add_u32 s{S_SOFF}, s{S_QB}, {16*t*8192}")
        for r in range(4):
            off = f" offset:{r*1024}" if r else ""
            e(f"buffer_load_dwordx4 v{VQ+r}, {srd(SWQ)}, s{S_SOFF} offen{off}{ntr} lds"); vm.add(("q", t))
    def x_chunk(X):
        e(f"s_add_u32 m0, s{S_LX}, {(X&1)*8192}")
        e(f"s_add_u32 s{S_SOFF}, s{S_XB}, {X*128}")
        for n in range(2):
            off = f" offset:{n*1024}" if n else ""
            e(f"buffer_load_dwordx4 v{VX+n}, {srd(SX)}, s{S_SOFF} offen{off}{ntx} lds"); vm.add(("x", X))
    def o_stage(t):
        e(f"s_add_u32 m0, s{S_LO}, {(t%NSO)*16384}")
        e(f"s_add_u32 s{S_SOFF}, s{S_OB if t < 16 else S_QB}, {16*(t%16)*896}")
        for n in range(4):
            off = f" offset:{n*1024}" if n else ""
            if n == 3: e("s_mov_b64 exec, 0xffffffff")
            nto = " nt" if opts["nt_ringo"] else ""
            if not (opts["onoload"] and t > 5): e(f"buffer_load_dwordx4 v{VO+n}, {srd(SWO)}, s{S_SOFF} offen{off}{nto} lds"); vm.add(("o", t))
        e("s_mov_b64 exec, -1")
    x_chunk(0)
    for t in range(4): q_stage(t)
    x_chunk(1); q_stage(4)
    do_miss(opts["m_post"])
    c("remaining address setup (off the critical path)")
    e("s_mov_b32 s68, 9363")
    for n in range(4):
        e(f"v_add_u32 v1, {64*n}, v0"); e("v_mul_u32_u24 v2, s68, v1"); e("v_lshrrev_b32 v2, 18, v2")
        e("v_mul_u32_u24 v2, 448, v2"); e("v_lshl_add_u32 v2, v1, 4, v2"); e(f"v_subrev_u32 v{VO+n}, {n*1024}, v2")
    e("v_lshrrev_b32 v1, 5, v0"); e("v_and_b32 v2, 31, v0")
    for par in range(2):
        e(f"v_or_b32 v4, {2*par}, v1"); e("v_lshlrev_b32 v4, 2, v4"); e("v_xor_b32 v4, v4, v2"); e("v_lshlrev_b32 v4, 4, v4")
        e("v_lshl_add_u32 v4, v1, 9, v4"); e(f"v_add_u32 v{VW+par}, s{S_KV}, v4")
    e(f"s_and_b32 s68, s{S_LW}, 1"); e(f"s_lshr_b32 s69, s{S_LW}, 1")
    e(f"s_mul_i32 s{S_LO}, s68, 7168"); e(f"s_mul_i32 s70, s69, 3584"); e(f"s_add_u32 s{S_LO}, s{S_LO}, s70"); e(f"s_add_u32 s{S_LO}, s{S_LO}, {RING_O}")
    e(f"s_mul_i32 s70, s69, 7168"); e(f"s_mul_i32 s71, s68, 448"); e("s_add_u32 s70, s70, s71")
    e(f"s_mul_i32 s71, s68, {256*896}"); e(f"s_add_u32 s{S_OB}, s70, s71")
    e(f"s_sub_u32 s71, {256*896}, s71"); e(f"s_add_u32 s61, s70, s71")
    acc = 0.0
    for t in range(0, 29):
        if t < 28: vm.wait([("q", t), ("x", t//4)])
        else:
            while miss and miss[0][0] is k_load: do_miss(1)
            vm.wait(["k"])
        e(f"s_barrier ; B{t}")
        if t >= 1 and t + 4 < 28: q_stage(t+4)
        if t >= 4 and t % 4 == 0 and t//4 + 1 <= 6: x_chunk(t//4 + 1)
        acc += opts["m_rate"] / 100.0
        n = int(acc); acc -= n; do_miss(n)
    e(f"s_mov_b32 s{S_QB}, s61")
    do_miss(99)
    o_stage(0); o_stage(1)
    for n in range(16):
        if n % 4 == 0: vm.wait([("v", n+3)])
        e(f"ds_write_b128 v{VW+(n&1)}, {vr(VD+4*n,4)} offset:{n*1024}")
    e("s_waitcnt lgkmcnt(0)")
    e("s_barrier ; B29")
    for t in range(2, 6): o_stage(t)
    for t in range(0, 33):
        if t < 32: vm.wait([("o", t)])
        e(f"s_barrier ; B'{t}")
        if t >= 1 and t + 5 < 32: o_stage(t+5)
    e("s_endpgm")

def reduce_body(first_unit_sgpr):
    pass

def reduce_kernel():
    lab("reduce_kernel")
    e("s_cmp_ge_u32 s2, 256"); e("s_cbranch_scc1 R_end")
    e("s_load_dwordx2 s[24:25], s[0:1], 80")
    e("s_load_dwordx2 s[28:29], s[0:1], 96")
    e("v_lshrrev_b32 v1, 6, v0"); e("v_and_b32 v0, 63, v0"); e("s_nop 0"); e("v_readfirstlane_b32 s3, v1")
    e("s_lshr_b32 s64, s2, 3"); e("s_and_b32 s65, s2, 7")
    e("s_mul_i32 s66, s65, 7"); e("s_add_u32 s66, s66, s3")
    e("s_waitcnt lgkmcnt(0)")
    e("s_mul_i32 s68, s64, 458752"); make_srd(SWS, 28, 68, 458752)
    e("s_mov_b32 s68, 0"); make_srd(SOUT, 24, 68, 1835008)
    e("v_lshlrev_b32 v1, 4, v0")
    e("s_lshl_b32 s68, s66, 10")
    for j in range(8):
        e(f"buffer_load_dwordx4 {vr(8+4*j,4)}, v1, {srd(SWS)}, s68 offen")
        if j < 7: e("s_add_u32 s68, s68, 57344")
    e("s_and_b32 s69, s66, 1"); e("s_lshr_b32 s70, s66, 1")
    e("s_cmp_ge_u32 s70, 14"); e("s_cselect_b32 s71, 1, 0"); e("s_mul_i32 s72, s71, 14"); e("s_sub_u32 s70, s70, s72")
    e("s_and_b32 s72, s64, 15"); e("s_lshr_b32 s73, s64, 4")
    e("s_lshl_b32 s72, s72, 1"); e("s_add_u32 s72, s72, s71"); e("s_mul_i32 s72, s72, 57344")
    e("s_mul_i32 s73, s73, 896"); e("s_add_u32 s72, s72, s73"); e("s_lshl_b32 s70, s70, 6"); e("s_add_u32 s72, s72, s70")
    e("s_lshl_b32 s69, s69, 4"); e("s_add_u32 s72, s72, s69")
    e("v_and_b32 v2, 31, v0"); e("v_mul_u32_u24 v2, 1792, v2"); e("v_lshrrev_b32 v3, 5, v0"); e("v_lshl_add_u32 v2, v3, 5, v2")
    for j in range(8):
        e(f"s_waitcnt vmcnt({7-j})")
        for i in range(4):
            if j == 0:
                e(f"v_lshlrev_b32 v{40+2*i}, 16, v{8+i}"); e(f"v_and_b32 v{41+2*i}, 0xffff0000, v{8+i}")
            else:
                e(f"v_lshlrev_b32 v4, 16, v{8+4*j+i}"); e(f"v_and_b32 v5, 0xffff0000, v{8+4*j+i}")
                e(f"v_add_f32 v{40+2*i}, v{40+2*i}, v4"); e(f"v_add_f32 v{41+2*i}, v{41+2*i}, v5")
    for i in range(4): e(f"v_cvt_pk_bf16_f32 v{48+i}, v{40+2*i}, v{41+2*i}")
    e(f"buffer_store_dwordx4 v[48:51], v2, {srd(SOUT)}, s72 offen")
    lab("R_end")
    e("s_endpgm")

def kd(name, vg, sg=102):
    return f""".amdhsa_kernel {name}
  .amdhsa_next_free_vgpr {vg}
  .amdhsa_next_free_sgpr {sg}
  .amdhsa_accum_offset {(vg+3)//4*4}
  .amdhsa_group_segment_fixed_size 0
  .amdhsa_kernarg_size 104
  .amdhsa_user_sgpr_count 2
  .amdhsa_user_sgpr_kernarg_segment_ptr 1
  .amdhsa_system_sgpr_workgroup_id_x 1
.end_amdhsa_kernel"""

hdr = """; Fused 2-branch cached-MHA block (Q-proj, attention, out-proj) for gfx950 -- generated by gen/gen.py
; @launch kernel=main_kernel grid=(256,1,1) block=(512,1,1) lds=163840
; @launch kernel=reduce_kernel grid=(256,1,1) block=(448,1,1) lds=0
.amdgcn_target "amdgcn-amd-amdhsa--gfx950"
.text"""
out = [hdr, ".globl main_kernel", ".p2align 8", ".type main_kernel,@function"]
main_kernel(); out += L; L.clear()
out += [".globl reduce_kernel", ".p2align 8", ".type reduce_kernel,@function"]
reduce_kernel(); out += L; L.clear()
out += ['.section .rodata,"a"', ".p2align 6", kd("main_kernel", 256), ".p2align 6", kd("reduce_kernel", 56)]
open(sys.argv[1], "w").write("\n".join(out) + "\n")
```

```python
import sys
NAME = "concat_heads__mha_block_cached__mha_block_cached__near_ridge"
opts = dict(sleep=4, fused=1, stamps=0, nt_kv=1, delay_kv=0, pf=1, pf_at=12, noread=0, nomfma=0, noprio=0, nokv=0, nt_pf=1, nt_ring=0, nt_x=1, m_pre=4, m_post=2, m_rate=110, wo_pos=32, wo_fl=0, wo_full=0, onoread=0, onomfma=0, onoload=0, nt_ringo=0)
for a in sys.argv[2:]:
    k, v = a.split("="); opts[k] = int(v)
L = []
def e(s): L.append("    " + s)
def lab(s): L.append(s + ":")
def c(s): L.append("    ; " + s)
def vr(a, n): return f"v[{a}:{a+n-1}]"

RING_Q = 0; NSQ = 5; XR = 81920; KR = 98304; VR = 0; RING_O = 65536; NSO = 6; EX = 0
S_WAVE = 3
SX, SK, SV, SWQ, SWO, SWS, SDBG, SOUT = 32, 36, 40, 44, 48, 52, 56, 60
S_BR, S_B, S_HP, S_PAIR = 64, 65, 66, 67
S_T0, S_T1, S_T2, S_T3 = 68, 69, 70, 71
S_SLOT, S_CNT, S_SOFF, S_C = 72, 73, 74, 75
SB = 78
def srd(n): return f"s[{n}:{n+3}]"

class VM:
    def __init__(s): s.ops = []
    def add(s, tag): s.ops.append(tag)
    def wait(s, tags):
        idx = max([i for i, t in enumerate(s.ops) if t in tags], default=-1)
        n = len(s.ops) - 1 - idx
        assert n <= 63
        if idx >= 0:
            e(f"s_waitcnt vmcnt({n})")
            s.ops = s.ops[idx+1:]

def stamp(i):
    if opts["stamps"]:
        e(f"s_memtime s[{78+2*i}:{79+2*i}]" if i else "s_memtime s[78:79]") if False else e(f"s_memtime s[{SB+2*i}:{SB+1+2*i}]")

def make_srd(n, plo, add_lo, nrec):
    e(f"s_add_u32 s{n}, s{plo}, s{add_lo}")
    e(f"s_addc_u32 s{n+1}, s{plo+1}, 0")
    e(f"s_and_b32 s{n+1}, s{n+1}, 0xffff")
    if isinstance(nrec, int): e(f"s_mov_b32 s{n+2}, {nrec}")
    else: e(f"s_mov_b32 s{n+2}, {nrec}")
    e(f"s_mov_b32 s{n+3}, 0x20000")

def decode_wg():
    e("s_and_b32 s68, s2, 7")
    e("s_lshr_b32 s69, s2, 3")
    e(f"s_lshr_b32 s{S_BR}, s68, 2")
    e(f"s_and_b32 s{S_PAIR}, s69, 1")
    e(f"s_lshr_b32 s{S_B}, s69, 1")
    e("s_and_b32 s68, s68, 3")
    e("s_lshl_b32 s68, s68, 1")
    e(f"s_add_u32 s{S_HP}, s68, s{S_PAIR}")

def main_kernel():
    lab(MK)
    e("s_cmp_ge_u32 s2, 256")
    e("s_cbranch_scc1 L_end")
    e("s_load_dwordx16 s[4:19], s[0:1], 0")
    e("s_load_dwordx8 s[20:27], s[0:1], 64")
    e("s_load_dwordx2 s[28:29], s[0:1], 96")
    stamp(0)
    e("v_lshrrev_b32 v1, 6, v0")
    e("v_and_b32 v0, 63, v0")
    e("s_nop 0")
    e(f"v_readfirstlane_b32 s{S_WAVE}, v1")
    decode_wg()
    e("s_waitcnt lgkmcnt(0)")
    e(f"s_cmp_eq_u32 s{S_BR}, 0")
    e("s_cselect_b64 s[4:5], s[4:5], s[14:15]")
    e("s_cselect_b64 s[6:7], s[6:7], s[16:17]")
    e("s_cselect_b64 s[8:9], s[8:9], s[18:19]")
    e("s_cselect_b64 s[10:11], s[10:11], s[20:21]")
    e("s_cselect_b64 s[12:13], s[12:13], s[22:23]")
    e(f"s_mul_i32 s68, s{S_B}, 57344"); make_srd(SX, 4, 68, 57344)
    e(f"s_lshl_b32 s68, s{S_B}, 19"); e(f"s_lshl_b32 s69, s{S_HP}, 16"); e("s_add_u32 s68, s68, s69")
    make_srd(SK, 6, 68, 65536); make_srd(SV, 8, 68, 65536)
    e(f"s_lshl_b32 s68, s{S_HP}, 10"); e("s_sub_u32 s69, 3670016, s68"); make_srd(SWQ, 10, 68, "s69")
    e(f"s_mul_i32 s68, s{S_HP}, 458752"); make_srd(SWO, 12, 68, 458752)
    e(f"s_lshl_b32 s68, s{S_BR}, 4"); e(f"s_add_u32 s68, s68, s{S_B}"); e("s_lshl_b32 s68, s68, 3")
    e(f"s_add_u32 s68, s68, s{S_HP}"); e("s_mul_i32 s68, s68, 57344"); make_srd(SWS, 28, 68, 57344)
    e(f"s_cmp_lt_u32 s{S_WAVE}, 4"); e("s_cbranch_scc1 L_compute")
    loader()
    lab("L_compute")
    compute()
    lab("L_end")
    e("s_endpgm")

MF = "v_mfma_f32_32x32x16_bf16"
def compute():
    c("================= compute waves 0..3 =================")
    ACC = 0; AF = 128; XF = 192; AQB = 200; AQC = 204; AX = 208; AXT = 209; DUM = 210
    AK = 240; AV = 241; AO = 245; AOC = 246; AEW = 247; AER = 248; AST = 249; T0 = 250; T1 = 251; T2 = 252; T3 = 253; T4 = 254
    if not opts["noprio"]: e("s_setprio 1")
    S_HH, S_QH = 76, 77
    e(f"s_lshr_b32 s{S_HH}, s{S_WAVE}, 1"); e(f"s_and_b32 s{S_QH}, s{S_WAVE}, 1")
    c("lane decomposition: G=l>>4 r=(l>>2)&3 cc=l&3")
    e(f"v_bfe_u32 v1, v0, 2, 2")
    e(f"v_lshrrev_b32 v2, 5, v0")
    e(f"v_bfe_u32 v3, v0, 4, 1")
    e(f"v_and_b32 v4, 1, v0")
    e(f"v_bfe_u32 v5, v0, 1, 1")
    e(f"v_and_b32 v6, 31, v0")
    e("v_lshlrev_b32 v7, 13, v2"); e("v_lshl_add_u32 v7, v1, 10, v7")
    e("v_lshl_add_u32 v7, v3, 5, v7"); e("v_lshl_add_u32 v7, v4, 4, v7"); e("v_lshl_add_u32 v7, v5, 3, v7")
    e(f"s_lshl_b32 s68, s{S_HH}, 9"); e("v_add_u32 v7, s68, v7")
    for d in range(4):
        e(f"v_xor_b32 v8, {d}, v1"); e(f"v_lshl_add_u32 v{AQB+d}, v8, 6, v7")
    e("v_bfe_u32 v8, v0, 1, 3"); e("v_xor_b32 v8, v8, v2"); e("v_lshlrev_b32 v8, 4, v8"); e("v_lshl_add_u32 v8, v6, 7, v8")
    e(f"s_lshl_b32 s68, s{S_QH}, 12"); e(f"s_add_u32 s68, s68, {XR}"); e(f"v_add_u32 v{AX}, s68, v8")
    e("v_and_b32 v8, 15, v0"); e("v_xor_b32 v8, v8, v2"); e("v_lshlrev_b32 v8, 4, v8"); e("v_lshl_add_u32 v8, v6, 9, v8")
    e(f"s_lshl_b32 s69, s{S_HH}, 15"); e(f"s_add_u32 s68, s69, {KR}"); e(f"v_add_u32 v{AK}, s68, v8")
    e("v_lshlrev_b32 v7, 11, v2"); e("v_lshl_add_u32 v7, v1, 9, v7"); e("v_lshl_add_u32 v7, v3, 5, v7")
    e("v_and_b32 v8, 3, v0"); e("v_lshl_add_u32 v7, v8, 3, v7"); e("v_add_u32 v7, s69, v7")
    for d in range(4):
        e(f"v_xor_b32 v8, {d}, v1"); e(f"v_lshl_add_u32 v{AV+d}, v8, 6, v7")
    e("v_lshl_add_u32 v7, v2, 2, v1"); e("v_mul_u32_u24 v7, 448, v7")
    e("v_lshl_add_u32 v7, v4, 5, v7"); e("v_lshl_add_u32 v7, v3, 4, v7"); e("v_lshl_add_u32 v7, v5, 3, v7")
    e(f"s_mul_i32 s68, s{S_HH}, 7168"); e(f"s_add_u32 s68, s68, {RING_O}"); e(f"v_add_u32 v{AO}, s68, v7")
    e("v_lshlrev_b32 v7, 4, v0")
    e(f"s_lshl_b32 s68, s{S_WAVE}, 14"); e(f"v_add_u32 v{AEW}, s68, v7"); e(f"v_xor_b32 v{AER}, 0x8000, v{AEW}")
    e(f"s_mul_i32 s68, s{S_QH}, 14"); e(f"s_mul_i32 s69, s{S_HH}, 7"); e("s_add_u32 s68, s68, s69"); e("s_lshl_b32 s68, s68, 11")
    e(f"v_add_u32 v{AST}, s68, v7")
    c("zero Q accumulators")
    for i in range(128): e(f"v_mov_b32 v{i}, 0")
    def q_reads(buf, piece):
        r = [f"ds_read_b128 {vr(XF+4*buf,4)}, v{AXT}"]
        for dt in range(8):
            for u in range(2):
                r.append(f"ds_read_b64_tr_b16 {vr(AF+32*buf+4*dt+2*u,2)}, v{AQC+(dt&3)} offset:{u*4096+(dt>>2)*256}")
        return r
    e(f"s_mov_b32 s{S_SLOT}, 0")
    for d in range(4): e(f"v_mov_b32 v{AQC+d}, v{AQB+d}")
    e(f"v_mov_b32 v{AXT}, v{AX}")
    stamp(1)
    e("s_barrier ; B0")
    stamp(2)
    for r in q_reads(0, 0): e(r)
    e(f"s_mov_b32 s{S_CNT}, 7")
    lab("L_qloop")
    for p in range(4):
        cur = p & 1; nxt = cur ^ 1
        m = [f"{MF} {vr(16*dt,16)}, {vr(AF+32*cur+4*dt,4)}, {vr(XF+4*cur,4)}, {vr(16*dt,16)}" for dt in range(8)]
        rd = q_reads(nxt, (p+1) & 3)
        e("s_waitcnt lgkmcnt(14)")
        e(m[0])
        e(f"s_add_u32 s{S_SLOT}, s{S_SLOT}, 16384"); e(f"s_cmp_eq_u32 s{S_SLOT}, {NSQ*16384}"); e(f"s_cselect_b32 s{S_SLOT}, 0, s{S_SLOT}")
        if p == 3: e(f"v_xor_b32 v{AX}, 0x2000, v{AX}")
        e(f"v_xor_b32 v{AXT}, {((p+1)&3)<<5}, v{AX}")
        for d in range(4): e(f"v_add_u32 v{AQC+d}, s{S_SLOT}, v{AQB+d}")
        e("s_waitcnt lgkmcnt(0)"); e("s_barrier")
        k = 0
        if opts["noread"]: rd = []
        for j in range(1, 8):
            for _ in range(3):
                if k < len(rd): e(rd[k]); k += 1
            if not opts["nomfma"]: e(m[j])
    e(f"s_sub_u32 s{S_CNT}, s{S_CNT}, 1"); e(f"s_cmp_lg_u32 s{S_CNT}, 0"); e("s_cbranch_scc1 L_qloop")
    stamp(3)
    c("---- S^T = K Q^T")
    QP = 128; KF = 192; SA = 208
    e("s_waitcnt lgkmcnt(0)")
    def k_read(dt, s, kt):
        x = 2*dt + s
        return f"ds_read_b128 {vr(KF+4*(2*s+kt),4)}, v{T0+(x&1)} offset:{kt*16384+(x>>3)*256}"
    def k_addr(dt, s):
        x = 2*dt + s
        return f"v_xor_b32 v{T0+(x&1)}, {(x&7)<<5}, v{AK}"
    def cvt_tile(src, dst):
        return [f"v_cvt_pk_bf16_f32 v{dst+i}, v{src+2*i}, v{src+2*i+1}" for i in range(8)]
    for s in range(2):
        e(k_addr(0, s))
        for kt in range(2): e(k_read(0, s, kt))
    for x in cvt_tile(0, QP): e(x)
    e("s_nop 1")
    for dt in range(8):
        cv = cvt_tile(16*(dt+1), QP+8*(dt+1)) if dt < 7 else []
        for s in range(2):
            for kt in range(2):
                e("s_waitcnt lgkmcnt(3)" if dt < 7 else f"s_waitcnt lgkmcnt({3-(2*s+kt)})")
                cin = "0" if (dt == 0 and s == 0) else vr(SA+16*kt, 16)
                e(f"{MF} {vr(SA+16*kt,16)}, {vr(KF+4*(2*s+kt),4)}, {vr(QP+8*dt+4*s,4)}, {cin}")
                if dt < 7:
                    if kt == 0: e(k_addr(dt+1, s))
                    e(k_read(dt+1, s, kt))
                for _ in range(2):
                    if cv: e(cv.pop(0))
        if dt < 7: e("s_nop 0")
    stamp(4)
    c("---- softmax over keys (32 in-lane values + partner half)")
    PP = 192
    e("s_nop 7"); e("s_nop 3")
    e(f"v_max3_f32 v{T0}, v{SA}, v{SA+1}, v{SA+2}")
    e(f"v_max3_f32 v{T1}, v{SA+16}, v{SA+17}, v{SA+18}")
    for i in range(3, 15, 2):
        e(f"v_max3_f32 v{T0}, v{T0}, v{SA+i}, v{SA+i+1}")
        e(f"v_max3_f32 v{T1}, v{T1}, v{SA+16+i}, v{SA+16+i+1}")
    e(f"v_max3_f32 v{T0}, v{T0}, v{SA+15}, v{SA+31}")
    e(f"v_max_f32 v{T0}, v{T0}, v{T1}")
    e(f"v_mov_b32 v{T1}, v{T0}"); e("s_nop 1")
    e(f"v_permlane32_swap_b32 v{T0}, v{T1}"); e("s_nop 1")
    e(f"v_max_f32 v{T0}, v{T0}, v{T1}")
    e(f"s_mov_b32 s{S_C}, 0x3db8aa3b ; 0.0625*log2(e)")
    e(f"v_mul_f32 v{T0}, s{S_C}, v{T0}")
    for i in range(32): e(f"v_fma_f32 v{SA+i}, v{SA+i}, s{S_C}, -v{T0}")
    for i in range(32): e(f"v_exp_f32 v{SA+i}, v{SA+i}")
    e(f"v_add_f32 v{T0}, v{SA}, v{SA+1}"); e(f"v_add_f32 v{T1}, v{SA+2}, v{SA+3}")
    for i in range(4, 32, 2):
        e(f"v_add_f32 v{T0}, v{T0}, v{SA+i}"); e(f"v_add_f32 v{T1}, v{T1}, v{SA+i+1}")
    e(f"v_add_f32 v{T0}, v{T0}, v{T1}")
    e(f"v_mov_b32 v{T1}, v{T0}"); e("s_nop 1")
    e(f"v_permlane32_swap_b32 v{T0}, v{T1}"); e("s_nop 1")
    e(f"v_add_f32 v{T0}, v{T0}, v{T1}")
    e(f"v_rcp_f32 v{T0}, v{T0}"); e("s_nop 0")
    for i in range(32): e(f"v_mul_f32 v{SA+i}, v{SA+i}, v{T0}")
    for i in range(16): e(f"v_cvt_pk_bf16_f32 v{PP+i}, v{SA+2*i}, v{SA+2*i+1}")
    stamp(5)
    e("s_barrier")
    stamp(6)
    c("---- O^T = V^T P^T")
    VF = 208; OP = 128
    def v_reads(dt, ks):
        slot = (4*dt+ks) & 7
        return [f"ds_read_b64_tr_b16 {vr(VF+4*slot+2*u,2)}, v{AV+(dt&3)} offset:{(dt>>2)*256+(16*ks+8*u)*512}" for u in range(2)]
    seq = [(dt, ks) for dt in range(8) for ks in range(4)]
    PFD = 6
    for (dt, ks) in seq[:PFD]:
        for r in v_reads(dt, ks): e(r)
    for n, (dt, ks) in enumerate(seq):
        rem = min(PFD, len(seq) - n) - 1
        e(f"s_waitcnt lgkmcnt({2*rem})")
        cin = "0" if ks == 0 else vr(16*dt, 16)
        e(f"{MF} {vr(16*dt,16)}, {vr(VF+4*(n&7),4)}, {vr(PP+4*ks,4)}, {cin}")
        if n + PFD < len(seq):
            for r in v_reads(*seq[n+PFD]): e(r)
        if dt >= 2:
            cv = cvt_tile(16*(dt-2), OP+8*(dt-2))
            e(cv[2*ks]); e(cv[2*ks+1])
    for x in cvt_tile(16*6, OP+48): e(x)
    e("s_nop 7")
    for x in cvt_tile(16*7, OP+56): e(x)
    stamp(7)
    e("s_barrier")
    c("---- O exchange writes + out projection")
    def wf(buf, nt):
        if buf == 0: return 192 + 4*nt
        return 220 + 4*nt if nt < 5 else 112 + 4*(nt-5)
    def o_reads(buf):
        return [f"ds_read_b64_tr_b16 {vr(wf(buf,nt)+2*u,2)}, v{AOC} offset:{u*3584+nt*64}" for nt in range(7) for u in range(2)]
    e(f"v_mov_b32 v{AOC}, v{AO}")
    e(f"s_mov_b32 s{S_SLOT}, 0")
    for r in o_reads(0): e(r)
    for ks in range(16): e(f"ds_write_b128 v{AEW}, {vr(OP+4*ks,4)} offset:{ks*1024}")
    for i in range(112): e(f"v_mov_b32 v{i}, 0")
    e("s_waitcnt lgkmcnt(0)")
    e(f"s_mov_b32 s{S_CNT}, 2")
    lab("L_oloop")
    for p in range(16):
        cur = p & 1; nxt = cur ^ 1
        m = [f"{MF} {vr(16*nt,16)}, {vr(wf(cur,nt),4)}, {vr(OP+4*p,4)}, {vr(16*nt,16)}" for nt in range(7)]
        rd = o_reads(nxt)
        e("s_waitcnt lgkmcnt(12)")
        e(m[0])
        e(f"s_add_u32 s{S_SLOT}, s{S_SLOT}, 16384"); e(f"s_cmp_eq_u32 s{S_SLOT}, {NSO*16384}"); e(f"s_cselect_b32 s{S_SLOT}, 0, s{S_SLOT}")
        e(f"v_add_u32 v{AOC}, s{S_SLOT}, v{AO}")
        e("s_waitcnt lgkmcnt(0)"); e("s_barrier")
        k = 0
        pp = (p - 1) % 16
        if p == 0: e(f"s_cmp_eq_u32 s{S_CNT}, 2"); e("s_cbranch_scc1 L_skipex")
        e(f"ds_read_b128 {vr(OP+4*pp,4)}, v{AER} offset:{pp*1024}")
        if p == 0: lab("L_skipex")
        if opts["onoread"]: rd = []
        for j in range(1, 7):
            for _ in range(3):
                if k < len(rd): e(rd[k]); k += 1
            if not opts["onomfma"]: e(m[j])
    e(f"s_sub_u32 s{S_CNT}, s{S_CNT}, 1"); e(f"s_cmp_lg_u32 s{S_CNT}, 0"); e("s_cbranch_scc1 L_oloop")
    stamp(8)
    c("---- partial out -> ws (bf16, lane-linear units)")
    e("s_waitcnt lgkmcnt(0)")
    e("s_nop 4")
    sc = " sc1" if opts["fused"] else ""
    for nt in range(7):
        d = 128 + 8*nt
        for x in cvt_tile(16*nt, d): e(x)
        e(f"s_mov_b32 s68, {nt*2048}")
        e(f"buffer_store_dwordx4 {vr(d,4)}, v{AST}, {srd(SWS)}, s68 offen{sc}")
        e(f"buffer_store_dwordx4 {vr(d+4,4)}, v{AST}, {srd(SWS)}, s68 offen offset:1024{sc}")
    if opts["fused"]:
        e("s_waitcnt vmcnt(0)")
        stamp(9)
        tail()
    else:
        dump_stamps(10)
        e("s_endpgm")

def dump_stamps(n):
    if opts["stamps"]:
        e(f"s_cmp_lg_u32 s2, {opts['stamps']-1}"); e("s_cbranch_scc1 L_end")
        e(f"s_cmp_lg_u32 s{S_WAVE}, 0"); e("s_cbranch_scc1 L_end")
        e("s_waitcnt vmcnt(0)")
        stamp(n-1)
        e("s_waitcnt lgkmcnt(0)")
        e("s_mov_b32 s68, 0x8000000"); make_srd(SDBG, 28, 68, 256)
        e("v_mov_b32 v1, 0")
        for i in range(1, n):
            e(f"s_sub_u32 s68, s{SB+2*i}, s{SB}"); e("v_mov_b32 v2, s68")
            e(f"buffer_store_dword v2, v1, {srd(SDBG)}, 0 offen offset:{4*i}")

def tail():
    lab("L_tail")
    c("================= cross-workgroup reduction =================")
    e("s_barrier")
    e("v_mbcnt_lo_u32_b32 v0, -1, 0"); e("v_mbcnt_hi_u32_b32 v0, -1, v0")
    e(f"s_lshl_b32 s64, s{S_BR}, 4"); e(f"s_add_u32 s64, s64, s{S_B}")
    e(f"s_cmp_lg_u32 s{S_WAVE}, 7"); e("s_cbranch_scc1 L_nopoll")
    e("s_lshl_b32 s68, s64, 3"); make_srd(SDBG, 26, 68, 4)
    e("v_mov_b32 v1, 0"); e("v_mov_b32 v2, 1")
    e("s_mov_b64 exec, 1")
    e(f"buffer_atomic_add v2, v1, {srd(SDBG)}, 0 offen sc1")
    e(f"s_mov_b32 s{S_CNT}, 0x40000")
    lab("L_poll")
    e(f"buffer_load_dword v3, v1, {srd(SDBG)}, 0 offen sc1")
    e("s_waitcnt vmcnt(0)")
    e("v_readfirstlane_b32 s68, v3")
    e("s_cmp_ge_u32 s68, 8"); e("s_cbranch_scc1 L_polled")
    e(f"s_sleep {opts['sleep']}")
    e(f"s_sub_u32 s{S_CNT}, s{S_CNT}, 1"); e(f"s_cmp_lg_u32 s{S_CNT}, 0"); e("s_cbranch_scc1 L_poll")
    lab("L_polled")
    e("s_mov_b64 exec, -1")
    e("s_barrier")
    e("s_endpgm")
    lab("L_nopoll")
    e(f"s_mul_i32 s66, s{S_HP}, 7"); e(f"s_add_u32 s66, s66, s{S_WAVE}")
    reduce_setup()
    e("s_barrier")
    stamp(10)
    reduce_body(" sc1")
    dump_stamps(12)
    e("s_endpgm")

def loader():
    lab("L_loader")
    c("================= loader waves 4..7 =================")
    S_LW = 76
    VQ, VX, VO, VK, VL, VW, VPF, DUM, VD = 8, 12, 16, 20, 28, 29, 32, 36, 64
    ntk = " nt" if opts["nt_kv"] else ""; ntp = " nt" if opts["nt_pf"] else ""; ntr = " nt" if opts["nt_ring"] else ""
    ntx = " nt" if opts["nt_x"] else ""
    vm = VM()
    e(f"s_sub_u32 s{S_LW}, s{S_WAVE}, 4")
    c("L2 line prefetch: Wq row (16t+b), x half")
    e("v_lshrrev_b32 v1, 3, v0"); e("v_and_b32 v2, 7, v0"); e("v_lshlrev_b32 v2, 7, v2"); e(f"v_lshl_add_u32 v{VPF}, v1, 17, v2")
    e(f"s_lshl_b32 s68, s{S_LW}, 20"); e(f"s_lshl_b32 s69, s{S_B}, 13"); e("s_add_u32 s68, s68, s69")
    if opts["pf"]: e(f"buffer_load_dword v{DUM}, v{VPF}, {srd(SWQ)}, s68 offen{ntp}"); vm.add("pf")
    e("v_and_b32 v1, 31, v0"); e("v_mul_u32_u24 v1, 896, v1"); e("v_lshrrev_b32 v2, 5, v0"); e(f"v_lshl_add_u32 v{VPF+1}, v2, 7, v1")
    e(f"s_mul_i32 s68, s{S_PAIR}, 28672"); e(f"s_lshl_b32 s69, s{S_LW}, 8"); e("s_add_u32 s68, s68, s69")
    if opts["pf"]: e(f"buffer_load_dword v{DUM}, v{VPF+1}, {srd(SX)}, s68 offen{ntx}"); vm.add("pf")
    c("K dma patterns")
    S_KV = 77
    e("v_lshrrev_b32 v1, 5, v0"); e("v_and_b32 v2, 31, v0"); e("v_xor_b32 v3, v2, v1"); e("v_lshlrev_b32 v3, 4, v3")
    e("v_lshl_add_u32 v3, v1, 9, v3")
    for n in range(8): e(f"v_xor_b32 v{VK+n}, {(2*n)<<4}, v3")
    e(f"s_lshl_b32 s{S_KV}, s{S_LW}, 14")
    def k_load(n):
        e(f"s_add_u32 s{S_SOFF}, s{S_KV}, {n*1024}"); e(f"s_add_u32 m0, s{S_SOFF}, {KR}"); e("s_nop 0")
        e(f"buffer_load_dwordx4 v{VK+n%8}, {srd(SK)}, s{S_SOFF} offen{ntk} lds"); vm.add("k")
    def v_load(n):
        e(f"s_add_u32 s{S_SOFF}, s{S_KV}, {(n&~3)*1024}")
        e(f"buffer_load_dwordx4 {vr(VD+4*n,4)}, v{VL}, {srd(SV)}, s{S_SOFF} offen offset:{(n&3)*1024}{ntk}"); vm.add(("v", n))
    def wo_pf():
        e(f"s_mul_i32 s68, s{S_B}, 28672"); e(f"s_mul_i32 s69, s{S_LW}, 7168"); e("s_add_u32 s68, s68, s69")
        e(f"v_lshlrev_b32 v1, 7, v0")
        fl = ["", " nt", " sc0 nt", " nt sc1", " sc0 nt sc1", " sc0", " sc1"][opts["wo_fl"]]
        if opts["wo_full"]:
            for i in range(7):
                e(f"buffer_load_dwordx4 {vr(DUM,4)}, v{VL}, {srd(SWO)}, s68 offen{fl}"); vm.add("pf"); e("s_add_u32 s68, s68, 1024")
        else:
            e(f"buffer_load_dword v{DUM}, v1, {srd(SWO)}, s68 offen{fl}"); vm.add("pf")
    miss = [(k_load, n) for n in range(16)] + [(v_load, n) for n in range(16)]
    if opts["pf"]: miss.insert(int(opts["wo_pos"]), (lambda n: wo_pf(), 0))
    def do_miss(cnt):
        for _ in range(cnt):
            if miss: f, n = miss.pop(0); f(n)
    e(f"v_lshlrev_b32 v{VL}, 4, v0")
    do_miss(opts["m_pre"])
    for r in range(4):
        e(f"v_xor_b32 v1, {r<<2}, v0"); e(f"v_lshlrev_b32 v1, 4, v1"); e(f"v_add_u32 v{VQ+r}, {r*7168}, v1")
    e("v_lshrrev_b32 v2, 3, v0"); e("v_mul_u32_u24 v2, 896, v2"); e("v_and_b32 v3, 7, v0"); e("v_lshrrev_b32 v4, 4, v0")
    for n in range(2):
        e(f"v_add_u32 v5, {4*(n&1)}, v4"); e("v_xor_b32 v5, v5, v3"); e("v_lshl_add_u32 v5, v5, 4, v2")
        e(f"v_add_u32 v{VX+n}, {n*6144}, v5")
    S_QB, S_XB, S_LQ, S_LX, S_OB, S_LO = 4, 5, 30, 31, 62, 63
    e(f"s_lshl_b32 s{S_QB}, s{S_LW}, 15")
    e(f"s_lshl_b32 s{S_LQ}, s{S_LW}, 12")
    e(f"s_mul_i32 s{S_XB}, s{S_LW}, 14336")
    e(f"s_lshl_b32 s{S_LX}, s{S_LW}, 11"); e(f"s_add_u32 s{S_LX}, s{S_LX}, {XR}")
    def q_stage(t):
        e(f"s_add_u32 m0, s{S_LQ}, {(t%NSQ)*16384}")
        e(f"s_add_u32 s{S_SOFF}, s{S_QB}, {16*t*8192}")
        for r in range(4):
            off = f" offset:{r*1024}" if r else ""
            e(f"buffer_load_dwordx4 v{VQ+r}, {srd(SWQ)}, s{S_SOFF} offen{off}{ntr} lds"); vm.add(("q", t))
    def x_chunk(X):
        e(f"s_add_u32 m0, s{S_LX}, {(X&1)*8192}")
        e(f"s_add_u32 s{S_SOFF}, s{S_XB}, {X*128}")
        for n in range(2):
            off = f" offset:{n*1024}" if n else ""
            e(f"buffer_load_dwordx4 v{VX+n}, {srd(SX)}, s{S_SOFF} offen{off}{ntx} lds"); vm.add(("x", X))
    def o_stage(t):
        e(f"s_add_u32 m0, s{S_LO}, {(t%NSO)*16384}")
        e(f"s_add_u32 s{S_SOFF}, s{S_OB if t < 16 else S_QB}, {16*(t%16)*896}")
        for n in range(4):
            off = f" offset:{n*1024}" if n else ""
            if n == 3: e("s_mov_b64 exec, 0xffffffff")
            nto = " nt" if opts["nt_ringo"] else ""
            if not (opts["onoload"] and t > 5): e(f"buffer_load_dwordx4 v{VO+n}, {srd(SWO)}, s{S_SOFF} offen{off}{nto} lds"); vm.add(("o", t))
        e("s_mov_b64 exec, -1")
    x_chunk(0)
    for t in range(4): q_stage(t)
    x_chunk(1); q_stage(4)
    do_miss(opts["m_post"])
    c("remaining address setup (off the critical path)")
    e("s_mov_b32 s68, 9363")
    for n in range(4):
        e(f"v_add_u32 v1, {64*n}, v0"); e("v_mul_u32_u24 v2, s68, v1"); e("v_lshrrev_b32 v2, 18, v2")
        e("v_mul_u32_u24 v2, 448, v2"); e("v_lshl_add_u32 v2, v1, 4, v2"); e(f"v_subrev_u32 v{VO+n}, {n*1024}, v2")
    e("v_lshrrev_b32 v1, 5, v0"); e("v_and_b32 v2, 31, v0")
    for par in range(2):
        e(f"v_or_b32 v4, {2*par}, v1"); e("v_lshlrev_b32 v4, 2, v4"); e("v_xor_b32 v4, v4, v2"); e("v_lshlrev_b32 v4, 4, v4")
        e("v_lshl_add_u32 v4, v1, 9, v4"); e(f"v_add_u32 v{VW+par}, s{S_KV}, v4")
    e(f"s_and_b32 s68, s{S_LW}, 1"); e(f"s_lshr_b32 s69, s{S_LW}, 1")
    e(f"s_mul_i32 s{S_LO}, s68, 7168"); e(f"s_mul_i32 s70, s69, 3584"); e(f"s_add_u32 s{S_LO}, s{S_LO}, s70"); e(f"s_add_u32 s{S_LO}, s{S_LO}, {RING_O}")
    e(f"s_mul_i32 s70, s69, 7168"); e(f"s_mul_i32 s71, s68, 448"); e("s_add_u32 s70, s70, s71")
    e(f"s_mul_i32 s71, s68, {256*896}"); e(f"s_add_u32 s{S_OB}, s70, s71")
    e(f"s_sub_u32 s71, {256*896}, s71"); e(f"s_add_u32 s61, s70, s71")
    acc = 0.0
    for t in range(0, 29):
        if t < 28: vm.wait([("q", t), ("x", t//4)])
        else:
            while miss and miss[0][0] is k_load: do_miss(1)
            vm.wait(["k"])
        e(f"s_barrier ; B{t}")
        if t >= 1 and t + 4 < 28: q_stage(t+4)
        if t >= 4 and t % 4 == 0 and t//4 + 1 <= 6: x_chunk(t//4 + 1)
        acc += opts["m_rate"] / 100.0
        n = int(acc); acc -= n; do_miss(n)
    e(f"s_mov_b32 s{S_QB}, s61")
    do_miss(99)
    o_stage(0); o_stage(1)
    for n in range(16):
        if n % 4 == 0: vm.wait([("v", n+3)])
        e(f"ds_write_b128 v{VW+(n&1)}, {vr(VD+4*n,4)} offset:{n*1024}")
    e("s_waitcnt lgkmcnt(0)")
    e("s_barrier ; B29")
    for t in range(2, 6): o_stage(t)
    for t in range(0, 33):
        if t < 32: vm.wait([("o", t)])
        e(f"s_barrier ; B'{t}")
        if t >= 1 and t + 5 < 32: o_stage(t+5)
    e("s_branch L_tail" if opts["fused"] else "s_endpgm")

def reduce_setup():
    e("s_mul_i32 s68, s64, 458752"); make_srd(SWS, 28, 68, 458752)
    e("s_mov_b32 s68, 0"); make_srd(SOUT, 24, 68, 1835008)
    e("v_lshlrev_b32 v1, 4, v0")
    e("s_and_b32 s69, s66, 1"); e("s_lshr_b32 s70, s66, 1")
    e("s_cmp_ge_u32 s70, 14"); e("s_cselect_b32 s71, 1, 0"); e("s_mul_i32 s72, s71, 14"); e("s_sub_u32 s70, s70, s72")
    e("s_and_b32 s72, s64, 15"); e("s_lshr_b32 s73, s64, 4")
    e("s_lshl_b32 s72, s72, 1"); e("s_add_u32 s72, s72, s71"); e("s_mul_i32 s72, s72, 57344")
    e("s_mul_i32 s73, s73, 896"); e("s_add_u32 s72, s72, s73"); e("s_lshl_b32 s70, s70, 6"); e("s_add_u32 s72, s72, s70")
    e("s_lshl_b32 s69, s69, 4"); e("s_add_u32 s72, s72, s69")
    e("v_and_b32 v2, 31, v0"); e("v_mul_u32_u24 v2, 1792, v2"); e("v_lshrrev_b32 v3, 5, v0"); e("v_lshl_add_u32 v2, v3, 5, v2")
    e("s_lshl_b32 s68, s66, 10")

def reduce_body(fl):
    for j in range(8):
        e(f"buffer_load_dwordx4 {vr(8+4*j,4)}, v1, {srd(SWS)}, s68 offen{fl}")
        if j < 7: e("s_add_u32 s68, s68, 57344")
    for j in range(8):
        e(f"s_waitcnt vmcnt({7-j})")
        for i in range(4):
            if j == 0:
                e(f"v_lshlrev_b32 v{40+2*i}, 16, v{8+i}"); e(f"v_and_b32 v{41+2*i}, 0xffff0000, v{8+i}")
            else:
                e(f"v_lshlrev_b32 v4, 16, v{8+4*j+i}"); e(f"v_and_b32 v5, 0xffff0000, v{8+4*j+i}")
                e(f"v_add_f32 v{40+2*i}, v{40+2*i}, v4"); e(f"v_add_f32 v{41+2*i}, v{41+2*i}, v5")
    for i in range(4): e(f"v_cvt_pk_bf16_f32 v{48+i}, v{40+2*i}, v{41+2*i}")
    e(f"buffer_store_dwordx4 v[48:51], v2, {srd(SOUT)}, s72 offen")

def reduce_kernel():
    lab("reduce_kernel")
    e("s_cmp_ge_u32 s2, 256"); e("s_cbranch_scc1 R_end")
    e("s_load_dwordx2 s[24:25], s[0:1], 80")
    e("s_load_dwordx2 s[28:29], s[0:1], 96")
    e("v_lshrrev_b32 v1, 6, v0"); e("v_and_b32 v0, 63, v0"); e("s_nop 0"); e("v_readfirstlane_b32 s3, v1")
    e("s_lshr_b32 s64, s2, 3"); e("s_and_b32 s65, s2, 7")
    e("s_mul_i32 s66, s65, 7"); e("s_add_u32 s66, s66, s3")
    e("s_waitcnt lgkmcnt(0)")
    reduce_setup()
    reduce_body("")
    lab("R_end")
    e("s_endpgm")

def kd(name, vg, sg=102):
    return f""".amdhsa_kernel {name}
  .amdhsa_next_free_vgpr {vg}
  .amdhsa_next_free_sgpr {sg}
  .amdhsa_accum_offset {(vg+3)//4*4}
  .amdhsa_group_segment_fixed_size 0
  .amdhsa_kernarg_size 104
  .amdhsa_user_sgpr_count 2
  .amdhsa_user_sgpr_kernarg_segment_ptr 1
  .amdhsa_system_sgpr_workgroup_id_x 1
.end_amdhsa_kernel"""

MK = NAME + "_kernel" if opts["fused"] else "main_kernel"
hdr = "; Fused 2-branch cached-MHA block (Q-proj, attention, out-proj) for gfx950 -- generated by gen/gen.py\n"
if opts["fused"]: hdr += "; @launch grid=(256,1,1) block=(512,1,1) lds=163840\n"
else: hdr += "; @launch kernel=main_kernel grid=(256,1,1) block=(512,1,1) lds=163840\n; @launch kernel=reduce_kernel grid=(256,1,1) block=(448,1,1) lds=0\n"
hdr += '.amdgcn_target "amdgcn-amd-amdhsa--gfx950"\n.text'
out = [hdr, f".globl {MK}", ".p2align 8", f".type {MK},@function"]
main_kernel(); out += L; L.clear()
if not opts["fused"]:
    out += [".globl reduce_kernel", ".p2align 8", ".type reduce_kernel,@function"]
    reduce_kernel(); out += L; L.clear()
out += ['.section .rodata,"a"', ".p2align 6", kd(MK, 256)]
if not opts["fused"]: out += [".p2align 6", kd("reduce_kernel", 56)]
open(sys.argv[1], "w").write("\n".join(out) + "\n")
```

```python
import sys
NAME = "concat_heads__mha_block_cached__mha_block_cached__near_ridge"
opts = dict(rf=1, flg=1, tlbw=1, fstride=8, st_fl=0, sleep=4, fused=1, stamps=0, nt_kv=1, delay_kv=0, pf=1, pf_at=12, noread=0, nomfma=0, noprio=0, nokv=0, nt_pf=1, nt_ring=0, nt_x=1, m_pre=4, m_post=2, m_rate=110, wo_pos=32, wo_fl=0, wo_full=0, onoread=0, onomfma=0, onoload=0, nt_ringo=0)
for a in sys.argv[2:]:
    k, v = a.split("="); opts[k] = int(v)
L = []
def e(s): L.append("    " + s)
def lab(s): L.append(s + ":")
def c(s): L.append("    ; " + s)
def vr(a, n): return f"v[{a}:{a+n-1}]"

RING_Q = 0; NSQ = 5; XR = 81920; KR = 98304; VR = 0; RING_O = 65536; NSO = 6; EX = 0
S_WAVE = 3
SX, SK, SV, SWQ, SWO, SWS, SDBG, SOUT = 32, 36, 40, 44, 48, 52, 56, 60
S_BR, S_B, S_HP, S_PAIR = 64, 65, 66, 67
S_T0, S_T1, S_T2, S_T3 = 68, 69, 70, 71
S_SLOT, S_CNT, S_SOFF, S_C = 72, 73, 74, 75
SB = 78
SFLG = 16
def srd(n): return f"s[{n}:{n+3}]"

class VM:
    def __init__(s): s.ops = []
    def add(s, tag): s.ops.append(tag)
    def wait(s, tags):
        idx = max([i for i, t in enumerate(s.ops) if t in tags], default=-1)
        n = len(s.ops) - 1 - idx
        assert n <= 63
        if idx >= 0:
            e(f"s_waitcnt vmcnt({n})")
            s.ops = s.ops[idx+1:]

def stamp(i):
    if opts["stamps"]:
        e(f"s_memtime s[{78+2*i}:{79+2*i}]" if i else "s_memtime s[78:79]") if False else e(f"s_memtime s[{SB+2*i}:{SB+1+2*i}]")

def make_srd(n, plo, add_lo, nrec):
    e(f"s_add_u32 s{n}, s{plo}, s{add_lo}")
    e(f"s_addc_u32 s{n+1}, s{plo+1}, 0")
    e(f"s_and_b32 s{n+1}, s{n+1}, 0xffff")
    if isinstance(nrec, int): e(f"s_mov_b32 s{n+2}, {nrec}")
    else: e(f"s_mov_b32 s{n+2}, {nrec}")
    e(f"s_mov_b32 s{n+3}, 0x20000")

def decode_wg():
    e("s_and_b32 s68, s2, 7")
    e("s_lshr_b32 s69, s2, 3")
    e(f"s_lshr_b32 s{S_BR}, s68, 2")
    e(f"s_and_b32 s{S_PAIR}, s69, 1")
    e(f"s_lshr_b32 s{S_B}, s69, 1")
    e("s_and_b32 s68, s68, 3")
    e("s_lshl_b32 s68, s68, 1")
    e(f"s_add_u32 s{S_HP}, s68, s{S_PAIR}")

def main_kernel():
    lab(MK)
    e("s_cmp_ge_u32 s2, 256")
    e("s_cbranch_scc1 L_end")
    e("s_load_dwordx16 s[4:19], s[0:1], 0")
    e("s_load_dwordx8 s[20:27], s[0:1], 64")
    e("s_load_dwordx2 s[28:29], s[0:1], 96")
    stamp(0)
    e("v_lshrrev_b32 v1, 6, v0")
    e("v_and_b32 v0, 63, v0")
    e("s_nop 0")
    e(f"v_readfirstlane_b32 s{S_WAVE}, v1")
    decode_wg()
    e("s_waitcnt lgkmcnt(0)")
    e(f"s_cmp_eq_u32 s{S_BR}, 0")
    e("s_cselect_b64 s[4:5], s[4:5], s[14:15]")
    e("s_cselect_b64 s[6:7], s[6:7], s[16:17]")
    e("s_cselect_b64 s[8:9], s[8:9], s[18:19]")
    e("s_cselect_b64 s[10:11], s[10:11], s[20:21]")
    e("s_cselect_b64 s[12:13], s[12:13], s[22:23]")
    if opts["stamps"]: e("s_memrealtime s[14:15]")
    e(f"s_mul_i32 s68, s{S_B}, 57344"); make_srd(SX, 4, 68, 57344)
    e(f"s_lshl_b32 s68, s{S_B}, 19"); e(f"s_lshl_b32 s69, s{S_HP}, 16"); e("s_add_u32 s68, s68, s69")
    make_srd(SK, 6, 68, 65536); make_srd(SV, 8, 68, 65536)
    e(f"s_lshl_b32 s68, s{S_HP}, 10"); e("s_sub_u32 s69, 3670016, s68"); make_srd(SWQ, 10, 68, "s69")
    e(f"s_mul_i32 s68, s{S_HP}, 458752"); make_srd(SWO, 12, 68, 458752)
    e(f"s_lshl_b32 s68, s{S_BR}, 4"); e(f"s_add_u32 s68, s68, s{S_B}"); e("s_lshl_b32 s68, s68, 3")
    e(f"s_add_u32 s68, s68, s{S_HP}"); e("s_mul_i32 s68, s68, 57344"); make_srd(SWS, 28, 68, 57344)
    if opts["flg"]:
        fs = opts["fstride"]
        e(f"s_lshl_b32 s68, s{S_BR}, 4"); e(f"s_add_u32 s68, s68, s{S_B}"); e("s_lshl_b32 s68, s68, 3")
        make_srd(SDBG, 26, 68, 4)
        e(f"s_lshl_b32 s68, s68, {fs}"); e("s_add_u32 s68, s68, 0x4000000"); make_srd(SFLG, 28, 68, 8 << fs)
    e(f"s_cmp_lt_u32 s{S_WAVE}, 4"); e("s_cbranch_scc1 L_compute")
    loader()
    lab("L_compute")
    compute()
    lab("L_end")
    e("s_endpgm")

MF = "v_mfma_f32_32x32x16_bf16"
def compute():
    c("================= compute waves 0..3 =================")
    ACC = 0; AF = 128; XF = 192; AQB = 200; AQC = 204; AX = 208; AXT = 209; DUM = 210
    AK = 240; AV = 241; AO = 245; AOC = 246; AEW = 247; AER = 248; AST = 249; T0 = 250; T1 = 251; T2 = 252; T3 = 253; T4 = 254
    if not opts["noprio"]: e("s_setprio 1")
    S_HH, S_QH = 76, 77
    e(f"s_lshr_b32 s{S_HH}, s{S_WAVE}, 1"); e(f"s_and_b32 s{S_QH}, s{S_WAVE}, 1")
    c("lane decomposition: G=l>>4 r=(l>>2)&3 cc=l&3")
    e(f"v_bfe_u32 v1, v0, 2, 2")
    e(f"v_lshrrev_b32 v2, 5, v0")
    e(f"v_bfe_u32 v3, v0, 4, 1")
    e(f"v_and_b32 v4, 1, v0")
    e(f"v_bfe_u32 v5, v0, 1, 1")
    e(f"v_and_b32 v6, 31, v0")
    e("v_lshlrev_b32 v7, 13, v2"); e("v_lshl_add_u32 v7, v1, 10, v7")
    e("v_lshl_add_u32 v7, v3, 5, v7"); e("v_lshl_add_u32 v7, v4, 4, v7"); e("v_lshl_add_u32 v7, v5, 3, v7")
    e(f"s_lshl_b32 s68, s{S_HH}, 9"); e("v_add_u32 v7, s68, v7")
    for d in range(4):
        e(f"v_xor_b32 v8, {d}, v1"); e(f"v_lshl_add_u32 v{AQB+d}, v8, 6, v7")
    e("v_bfe_u32 v8, v0, 1, 3"); e("v_xor_b32 v8, v8, v2"); e("v_lshlrev_b32 v8, 4, v8"); e("v_lshl_add_u32 v8, v6, 7, v8")
    e(f"s_lshl_b32 s68, s{S_QH}, 12"); e(f"s_add_u32 s68, s68, {XR}"); e(f"v_add_u32 v{AX}, s68, v8")
    e("v_and_b32 v8, 15, v0"); e("v_xor_b32 v8, v8, v2"); e("v_lshlrev_b32 v8, 4, v8"); e("v_lshl_add_u32 v8, v6, 9, v8")
    e(f"s_lshl_b32 s69, s{S_HH}, 15"); e(f"s_add_u32 s68, s69, {KR}"); e(f"v_add_u32 v{AK}, s68, v8")
    e("v_lshlrev_b32 v7, 11, v2"); e("v_lshl_add_u32 v7, v1, 9, v7"); e("v_lshl_add_u32 v7, v3, 5, v7")
    e("v_and_b32 v8, 3, v0"); e("v_lshl_add_u32 v7, v8, 3, v7"); e("v_add_u32 v7, s69, v7")
    for d in range(4):
        e(f"v_xor_b32 v8, {d}, v1"); e(f"v_lshl_add_u32 v{AV+d}, v8, 6, v7")
    e("v_lshl_add_u32 v7, v2, 2, v1"); e("v_lshlrev_b32 v7, 7, v7")
    e("v_lshl_add_u32 v7, v4, 5, v7"); e("v_lshl_add_u32 v7, v3, 4, v7"); e("v_lshl_add_u32 v7, v5, 3, v7")
    e("v_lshrrev_b32 v8, 1, v1"); e(f"v_xor_b32 v8, s{S_HH}, v8"); e(f"v_lshl_add_u32 v{AO}, v8, 6, v7")
    e("v_lshlrev_b32 v7, 4, v0")
    e(f"s_lshl_b32 s68, s{S_QH}, 14"); e(f"s_lshl_b32 s69, s{S_HH}, 15")
    e(f"s_sub_u32 s70, 65536, s69"); e("s_add_u32 s70, s70, s68"); e(f"v_add_u32 v{AEW}, s70, v7")
    e(f"s_add_u32 s70, 32768, s69"); e("s_add_u32 s70, s70, s68"); e(f"v_add_u32 v{AER}, s70, v7")
    e(f"s_mul_i32 s68, s{S_QH}, 14"); e(f"s_add_u32 s68, s68, s{S_HH}"); e("s_lshl_b32 s68, s68, 11")
    e(f"v_add_u32 v{AST}, s68, v7")
    e(f"s_cmp_eq_u32 s{S_HH}, 0"); e("s_cselect_b64 s[8:9], -1, 0")
    if opts["flg"]:
        c("wave 0: reset this workgroup's hand-off line in ws")
        e(f"s_cmp_lg_u32 s{S_WAVE}, 0"); e("s_cbranch_scc1 L_noreset")
        e(f"s_lshl_b32 s68, s{S_HP}, {opts['fstride']}")
        e("v_lshlrev_b32 v8, 2, v0"); e("v_mov_b32 v9, 0")
        e("s_mov_b64 exec, 0xff")
        e(f"buffer_store_dword v9, v8, {srd(SFLG)}, s68 offen sc1")
        e("s_mov_b64 exec, -1")
        lab("L_noreset")
    if opts["tlbw"]:
        c("wave 1: touch the partial slab / output pages (address translation warm-up; values unused)")
        e(f"s_cmp_lg_u32 s{S_WAVE}, 1"); e("s_cbranch_scc1 L_notlb")
        e(f"s_mul_i32 s68, s{S_B}, 114688"); make_srd(SOUT, 24, 68, 57344)
        e("v_mov_b32 v9, 0")
        e(f"buffer_load_dword v{T3}, v9, {srd(SWS)}, 0 offen sc1")
        e(f"buffer_load_dword v{T4}, v9, {srd(SOUT)}, 0 offen sc1")
        lab("L_notlb")
    c("zero Q accumulators")
    for i in range(128): e(f"v_mov_b32 v{i}, 0")
    def q_reads(buf, piece):
        r = [f"ds_read_b128 {vr(XF+4*buf,4)}, v{AXT}"]
        for dt in range(8):
            for u in range(2):
                r.append(f"ds_read_b64_tr_b16 {vr(AF+32*buf+4*dt+2*u,2)}, v{AQC+(dt&3)} offset:{u*4096+(dt>>2)*256}")
        return r
    e(f"s_mov_b32 s{S_SLOT}, 0")
    for d in range(4): e(f"v_mov_b32 v{AQC+d}, v{AQB+d}")
    e(f"v_mov_b32 v{AXT}, v{AX}")
    stamp(1)
    e("s_barrier ; B0")
    stamp(2)
    for r in q_reads(0, 0): e(r)
    e(f"s_mov_b32 s{S_CNT}, 7")
    lab("L_qloop")
    for p in range(4):
        cur = p & 1; nxt = cur ^ 1
        m = [f"{MF} {vr(16*dt,16)}, {vr(AF+32*cur+4*dt,4)}, {vr(XF+4*cur,4)}, {vr(16*dt,16)}" for dt in range(8)]
        rd = q_reads(nxt, (p+1) & 3)
        e("s_waitcnt lgkmcnt(14)")
        e(m[0])
        e(f"s_add_u32 s{S_SLOT}, s{S_SLOT}, 16384"); e(f"s_cmp_eq_u32 s{S_SLOT}, {NSQ*16384}"); e(f"s_cselect_b32 s{S_SLOT}, 0, s{S_SLOT}")
        if p == 3: e(f"v_xor_b32 v{AX}, 0x2000, v{AX}")
        e(f"v_xor_b32 v{AXT}, {((p+1)&3)<<5}, v{AX}")
        for d in range(4): e(f"v_add_u32 v{AQC+d}, s{S_SLOT}, v{AQB+d}")
        e("s_waitcnt lgkmcnt(0)"); e("s_barrier")
        k = 0
        if opts["noread"]: rd = []
        for j in range(1, 8):
            for _ in range(3):
                if k < len(rd): e(rd[k]); k += 1
            if not opts["nomfma"]: e(m[j])
    e(f"s_sub_u32 s{S_CNT}, s{S_CNT}, 1"); e(f"s_cmp_lg_u32 s{S_CNT}, 0"); e("s_cbranch_scc1 L_qloop")
    stamp(3)
    if opts["flg"] or opts["tlbw"]: e("s_waitcnt vmcnt(0)")
    if opts["flg"]:
        e(f"s_cmp_lg_u32 s{S_WAVE}, 0"); e("s_cbranch_scc1 L_nocnt")
        e(f"v_mov_b32 v{T3}, 0"); e(f"v_mov_b32 v{T4}, 1")
        e("s_mov_b64 exec, 1")
        e(f"buffer_atomic_add v{T4}, v{T3}, {srd(SDBG)}, 0 offen sc1")
        e("s_mov_b64 exec, -1")
        lab("L_nocnt")
    c("---- S^T = K Q^T")
    QP = 128; KF = 192; SA = 208
    e("s_waitcnt lgkmcnt(0)")
    def k_read(dt, s, kt):
        x = 2*dt + s
        return f"ds_read_b128 {vr(KF+4*(2*s+kt),4)}, v{T0+(x&1)} offset:{kt*16384+(x>>3)*256}"
    def k_addr(dt, s):
        x = 2*dt + s
        return f"v_xor_b32 v{T0+(x&1)}, {(x&7)<<5}, v{AK}"
    def cvt_tile(src, dst):
        return [f"v_cvt_pk_bf16_f32 v{dst+i}, v{src+2*i}, v{src+2*i+1}" for i in range(8)]
    for s in range(2):
        e(k_addr(0, s))
        for kt in range(2): e(k_read(0, s, kt))
    for x in cvt_tile(0, QP): e(x)
    e("s_nop 1")
    for dt in range(8):
        cv = cvt_tile(16*(dt+1), QP+8*(dt+1)) if dt < 7 else []
        for s in range(2):
            for kt in range(2):
                e("s_waitcnt lgkmcnt(3)" if dt < 7 else f"s_waitcnt lgkmcnt({3-(2*s+kt)})")
                cin = "0" if (dt == 0 and s == 0) else vr(SA+16*kt, 16)
                e(f"{MF} {vr(SA+16*kt,16)}, {vr(KF+4*(2*s+kt),4)}, {vr(QP+8*dt+4*s,4)}, {cin}")
                if dt < 7:
                    if kt == 0: e(k_addr(dt+1, s))
                    e(k_read(dt+1, s, kt))
                for _ in range(2):
                    if cv: e(cv.pop(0))
        if dt < 7: e("s_nop 0")
    stamp(4)
    c("---- softmax over keys (32 in-lane values + partner half)")
    PP = 192
    e("s_nop 7"); e("s_nop 3")
    e(f"v_max3_f32 v{T0}, v{SA}, v{SA+1}, v{SA+2}")
    e(f"v_max3_f32 v{T1}, v{SA+16}, v{SA+17}, v{SA+18}")
    for i in range(3, 15, 2):
        e(f"v_max3_f32 v{T0}, v{T0}, v{SA+i}, v{SA+i+1}")
        e(f"v_max3_f32 v{T1}, v{T1}, v{SA+16+i}, v{SA+16+i+1}")
    e(f"v_max3_f32 v{T0}, v{T0}, v{SA+15}, v{SA+31}")
    e(f"v_max_f32 v{T0}, v{T0}, v{T1}")
    e(f"v_mov_b32 v{T1}, v{T0}"); e("s_nop 1")
    e(f"v_permlane32_swap_b32 v{T0}, v{T1}"); e("s_nop 1")
    e(f"v_max_f32 v{T0}, v{T0}, v{T1}")
    e(f"s_mov_b32 s{S_C}, 0x3db8aa3b ; 0.0625*log2(e)")
    e(f"v_mul_f32 v{T0}, s{S_C}, v{T0}")
    for i in range(32): e(f"v_fma_f32 v{SA+i}, v{SA+i}, s{S_C}, -v{T0}")
    for i in range(32): e(f"v_exp_f32 v{SA+i}, v{SA+i}")
    e(f"v_add_f32 v{T0}, v{SA}, v{SA+1}"); e(f"v_add_f32 v{T1}, v{SA+2}, v{SA+3}")
    for i in range(4, 32, 2):
        e(f"v_add_f32 v{T0}, v{T0}, v{SA+i}"); e(f"v_add_f32 v{T1}, v{T1}, v{SA+i+1}")
    e(f"v_add_f32 v{T0}, v{T0}, v{T1}")
    e(f"v_mov_b32 v{T1}, v{T0}"); e("s_nop 1")
    e(f"v_permlane32_swap_b32 v{T0}, v{T1}"); e("s_nop 1")
    e(f"v_add_f32 v{T0}, v{T0}, v{T1}")
    e(f"v_rcp_f32 v{T0}, v{T0}"); e("s_nop 0")
    for i in range(32): e(f"v_mul_f32 v{SA+i}, v{SA+i}, v{T0}")
    for i in range(16): e(f"v_cvt_pk_bf16_f32 v{PP+i}, v{SA+2*i}, v{SA+2*i+1}")
    stamp(5)
    e("s_barrier")
    stamp(6)
    c("---- O^T = V^T P^T")
    VF = 208; OP = 128
    def v_reads(dt, ks):
        slot = (4*dt+ks) & 7
        return [f"ds_read_b64_tr_b16 {vr(VF+4*slot+2*u,2)}, v{AV+(dt&3)} offset:{(dt>>2)*256+(16*ks+8*u)*512}" for u in range(2)]
    seq = [(dt, ks) for dt in range(8) for ks in range(4)]
    PFD = 6
    for (dt, ks) in seq[:PFD]:
        for r in v_reads(dt, ks): e(r)
    def ex_write(dt):
        return [f"s_mov_b64 exec, s[8:9]",
                f"ds_write_b128 v{AEW}, {vr(OP+8*dt,4)} offset:{2*dt*1024}",
                f"ds_write_b128 v{AEW}, {vr(OP+8*dt+4,4)} offset:{(2*dt+1)*1024}",
                "s_mov_b64 exec, -1"]
    lg = []
    for x in seq[:PFD]: lg += [x, x]
    def lgwait(tag):
        idx = max(i for i, t in enumerate(lg) if t == tag); n = len(lg) - 1 - idx
        e(f"s_waitcnt lgkmcnt({min(n,15)})"); del lg[:idx+1]
    for n, (dt, ks) in enumerate(seq):
        lgwait((dt, ks))
        cin = "0" if ks == 0 else vr(16*dt, 16)
        e(f"{MF} {vr(16*dt,16)}, {vr(VF+4*(n&7),4)}, {vr(PP+4*ks,4)}, {cin}")
        if n + PFD < len(seq):
            for r in v_reads(*seq[n+PFD]): e(r); lg.append(seq[n+PFD])
        if dt >= 2:
            cv = cvt_tile(16*(dt-2), OP+8*(dt-2))
            e(cv[2*ks]); e(cv[2*ks+1])
        if dt >= 3 and ks == 0:
            for x in ex_write(dt-3): e(x)
            lg += ["w", "w"]
    for x in ex_write(5): e(x)
    for x in cvt_tile(16*6, OP+48): e(x)
    for x in ex_write(6): e(x)
    e("s_nop 3")
    for x in cvt_tile(16*7, OP+56): e(x)
    for x in ex_write(7): e(x)
    e("s_waitcnt lgkmcnt(0)")
    stamp(7)
    e("s_barrier")
    c("---- out projection: 7 passes of one 128-byte column block, K=512")
    PAR = 0; ACA = 64; ACB = 80; PK = 96
    sc = [" sc1", " sc0 sc1", " nt sc1", ""][opts["st_fl"]]
    S_ST = 10
    def o_rd(j, buf):
        return [f"ds_read_b64_tr_b16 {vr(buf+4*j+2*u,2)}, v{AOC} offset:{j*2048+u*1024}" for u in range(2)]
    def store_tile(acc):
        return cvt_tile(acc, PK) + [f"buffer_store_dwordx4 {vr(PK,4)}, v{AST}, {srd(SWS)}, s{S_ST} offen{sc}",
                                    f"buffer_store_dwordx4 {vr(PK+4,4)}, v{AST}, {srd(SWS)}, s{S_ST} offen offset:1024{sc}",
                                    f"s_add_u32 s{S_ST}, s{S_ST}, 4096"]
    WF = [192, 16*7]
    def wf(buf, j):
        if buf == 0: return 192 + 4*j
        return 112 + 4*j if j < 4 else 224 + 4*(j-4)
    def o_reads(buf):
        return [f"ds_read_b64_tr_b16 {vr(wf(buf,j)+2*u,2)}, v{AOC} offset:{j*2048+u*1024}" for j in range(8) for u in range(2)]
    def o_pass(hh, acc, prev, first):
        for st in range(4):
            cur = st & 1
            extra = []
            if st == 0 and prev is not None: extra = store_tile(prev)
            exr = []
            if first and hh == 0 and st in (1,):
                exr = [f"ds_read_b128 {vr(PAR+4*i,4)}, v{AER} offset:{i*1024}" for i in range(16)]
            rd = o_reads(cur ^ 1)
            for j in range(8):
                kk = 8*st + j
                b = (OP if (kk >> 4) == hh else PAR) + 4*(kk & 15)
                cin = "0" if kk == 0 else vr(acc, 16)
                if j == 0: e("s_waitcnt lgkmcnt(14)")
                e(f"{MF} {vr(acc,16)}, {vr(wf(cur,j),4)}, {vr(b,4)}, {cin}")
                if j == 0:
                    e(f"s_add_u32 s{S_SLOT}, s{S_SLOT}, 16384"); e(f"s_cmp_eq_u32 s{S_SLOT}, 163840"); e(f"s_cselect_b32 s{S_SLOT}, 0, s{S_SLOT}")
                    e(f"s_cmp_eq_u32 s{S_SLOT}, 32768"); e(f"s_cselect_b32 s{S_SLOT}, 98304, s{S_SLOT}")
                    e(f"v_add_u32 v{AOC}, s{S_SLOT}, v{AO}")
                    e("s_waitcnt lgkmcnt(0)"); e("s_barrier")
                if j < 7:
                    for _ in range(3 if (j % 3) != 2 else 2):
                        if exr: e(exr.pop(0))
                    for _ in range(3 if j < 2 else 2):
                        if rd: e(rd.pop(0))
                if j >= 3:
                    for _ in range(3):
                        if extra: e(extra.pop(0))
            assert not rd and not extra and not exr, (rd, extra, exr)
    e(f"s_mov_b32 s{S_SLOT}, 98304"); e(f"v_add_u32 v{AOC}, s{S_SLOT}, v{AO}")
    e(f"s_mov_b32 s{S_ST}, 0"); e(f"s_mov_b32 s{S_CNT}, 3")
    e(f"s_cmp_eq_u32 s{S_HH}, 0"); e("s_cbranch_scc0 L_oh1")
    for hh in range(2):
        if hh == 1:
            lab("L_oh1")
            for i in range(8): e(f"ds_read_b128 {vr(PAR+4*i,4)}, v{AER} offset:{i*1024}")
        for r in o_reads(0): e(r)
        if hh == 1:
            for i in range(8, 16): e(f"ds_read_b128 {vr(PAR+4*i,4)}, v{AER} offset:{i*1024}")
            for i in range(16): e(f"ds_write_b128 v{AEW}, {vr(OP+4*i,4)} offset:{i*1024}")
            e("s_waitcnt lgkmcnt(15)")
        o_pass(hh, ACA, None, True)
        lab(f"L_oloop{hh}")
        o_pass(hh, ACB, ACA, False)
        o_pass(hh, ACA, ACB, False)
        e(f"s_sub_u32 s{S_CNT}, s{S_CNT}, 1"); e(f"s_cmp_lg_u32 s{S_CNT}, 0"); e(f"s_cbranch_scc1 L_oloop{hh}")
        if hh == 0: e("s_branch L_odone")
    lab("L_odone")
    stamp(8)
    e("s_nop 7"); e("s_nop 3")
    for x in store_tile(ACA): e(x)
    if opts["fused"]:
        e("s_waitcnt vmcnt(0)")
        stamp(9)
        tail()
    else:
        dump_stamps(10)
        e("s_endpgm")

def dump_stamps(n):
    if opts["stamps"]:
        e(f"s_cmp_lg_u32 s{S_WAVE}, 0"); e("s_cbranch_scc1 L_end")
        e("s_waitcnt vmcnt(0)")
        stamp(n-1)
        e("s_waitcnt lgkmcnt(0)")
        e("s_memrealtime s[6:7]")
        e("s_lshl_b32 s68, s2, 6"); e("s_add_u32 s68, s68, 0x8000000"); make_srd(SDBG, 28, 68, 64)
        e("v_mov_b32 v1, 0")
        e("s_getreg_b32 s68, hwreg(HW_REG_XCC_ID)"); e("v_mov_b32 v2, s68"); e(f"buffer_store_dword v2, v1, {srd(SDBG)}, 0 offen offset:56")
        e("s_waitcnt lgkmcnt(0)")
        e("v_mov_b32 v2, s14"); e(f"buffer_store_dword v2, v1, {srd(SDBG)}, 0 offen offset:0")
        e("v_mov_b32 v2, s6"); e(f"buffer_store_dword v2, v1, {srd(SDBG)}, 0 offen offset:60")
        for i in range(1, n):
            e(f"s_sub_u32 s68, s{SB+2*i}, s{SB}"); e("v_mov_b32 v2, s68")
            e(f"buffer_store_dword v2, v1, {srd(SDBG)}, 0 offen offset:{4*i}")

def tail():
    lab("L_tail")
    c("================= cross-workgroup reduction =================")
    e("s_barrier")
    e("v_mbcnt_lo_u32_b32 v0, -1, 0"); e("v_mbcnt_hi_u32_b32 v0, -1, v0")
    e(f"s_lshl_b32 s64, s{S_BR}, 4"); e(f"s_add_u32 s64, s64, s{S_B}")
    e(f"s_cmp_lg_u32 s{S_WAVE}, 7"); e("s_cbranch_scc1 L_nopoll")
    if opts["flg"]:
        e("s_mov_b64 exec, 0xff")
        e(f"buffer_store_dword v2, v4, {srd(SFLG)}, 0 offen sc1")
        e(f"s_mov_b32 s{S_CNT}, 0x40000")
        lab("L_poll")
        e(f"buffer_load_dword v3, v1, {srd(SFLG)}, 0 offen sc1")
        e("s_waitcnt vmcnt(0)")
        e("v_cmp_eq_u32 vcc, 1, v3")
        e("s_cmp_eq_u32 vcc_lo, 0xff"); e("s_cbranch_scc1 L_polled")
        if opts["sleep"]: e(f"s_sleep {opts['sleep']}")
        e(f"s_sub_u32 s{S_CNT}, s{S_CNT}, 1"); e(f"s_cmp_lg_u32 s{S_CNT}, 0"); e("s_cbranch_scc1 L_poll")
    else:
        e("s_lshl_b32 s68, s64, 3"); make_srd(SDBG, 26, 68, 4)
        e("v_mov_b32 v1, 0"); e("v_mov_b32 v2, 1")
        e("s_mov_b64 exec, 1")
        e(f"buffer_atomic_add v2, v1, {srd(SDBG)}, 0 offen sc1")
        e(f"s_mov_b32 s{S_CNT}, 0x40000")
        lab("L_poll")
        e(f"buffer_load_dword v3, v1, {srd(SDBG)}, 0 offen sc1")
        e("s_waitcnt vmcnt(0)")
        e("v_readfirstlane_b32 s68, v3")
        e("s_cmp_ge_u32 s68, 8"); e("s_cbranch_scc1 L_polled")
        e(f"s_sleep {opts['sleep']}")
        e(f"s_sub_u32 s{S_CNT}, s{S_CNT}, 1"); e(f"s_cmp_lg_u32 s{S_CNT}, 0"); e("s_cbranch_scc1 L_poll")
    lab("L_polled")
    e("s_mov_b64 exec, -1")
    e("s_barrier")
    e("s_endpgm")
    lab("L_nopoll")
    e(f"s_mul_i32 s66, s{S_HP}, 7"); e(f"s_add_u32 s66, s66, s{S_WAVE}")
    reduce_setup()
    e("s_barrier")
    stamp(10)
    reduce_body(" sc1")
    dump_stamps(12)
    e("s_endpgm")

def loader():
    lab("L_loader")
    c("================= loader waves 4..7 =================")
    S_LW = 76
    VQ, VX, VO, VK, VL, VW, VPF, DUM, VD = 8, 12, 16, 20, 28, 29, 32, 36, 64
    ntk = " nt" if opts["nt_kv"] else ""; ntp = " nt" if opts["nt_pf"] else ""; ntr = " nt" if opts["nt_ring"] else ""
    ntx = " nt" if opts["nt_x"] else ""
    vm = VM()
    e(f"s_sub_u32 s{S_LW}, s{S_WAVE}, 4")
    def do_pf():
        c("L2 line prefetch: Wq row (16t+b), x half")
        e("v_lshrrev_b32 v1, 3, v0"); e("v_and_b32 v2, 7, v0"); e("v_lshlrev_b32 v2, 7, v2"); e(f"v_lshl_add_u32 v{VPF}, v1, 17, v2")
        e(f"s_lshl_b32 s68, s{S_LW}, 20"); e(f"s_lshl_b32 s69, s{S_B}, 13"); e("s_add_u32 s68, s68, s69")
        if opts["pf"]: e(f"buffer_load_dword v{DUM}, v{VPF}, {srd(SWQ)}, s68 offen{ntp}"); vm.add("pf")
        e("v_and_b32 v1, 31, v0"); e("v_mul_u32_u24 v1, 896, v1"); e("v_lshrrev_b32 v2, 5, v0"); e(f"v_lshl_add_u32 v{VPF+1}, v2, 7, v1")
        e(f"s_mul_i32 s68, s{S_PAIR}, 28672"); e(f"s_lshl_b32 s69, s{S_LW}, 8"); e("s_add_u32 s68, s68, s69")
        if opts["pf"]: e(f"buffer_load_dword v{DUM}, v{VPF+1}, {srd(SX)}, s68 offen{ntx}"); vm.add("pf")
    if not opts['rf']: do_pf()
    c("K dma patterns")
    S_KV = 77
    e("v_lshrrev_b32 v1, 5, v0"); e("v_and_b32 v2, 31, v0"); e("v_xor_b32 v3, v2, v1"); e("v_lshlrev_b32 v3, 4, v3")
    e("v_lshl_add_u32 v3, v1, 9, v3")
    for n in range(8): e(f"v_xor_b32 v{VK+n}, {(2*n)<<4}, v3")
    e(f"s_lshl_b32 s{S_KV}, s{S_LW}, 14")
    def k_load(n):
        e(f"s_add_u32 s{S_SOFF}, s{S_KV}, {n*1024}"); e(f"s_add_u32 m0, s{S_SOFF}, {KR}"); e("s_nop 0")
        e(f"buffer_load_dwordx4 v{VK+n%8}, {srd(SK)}, s{S_SOFF} offen{ntk} lds"); vm.add("k")
    def v_load(n):
        e(f"s_add_u32 s{S_SOFF}, s{S_KV}, {(n&~3)*1024}")
        e(f"buffer_load_dwordx4 {vr(VD+4*n,4)}, v{VL}, {srd(SV)}, s{S_SOFF} offen offset:{(n&3)*1024}{ntk}"); vm.add(("v", n))
    def wo_pf():
        e(f"s_mul_i32 s68, s{S_B}, 28672"); e(f"s_mul_i32 s69, s{S_LW}, 7168"); e("s_add_u32 s68, s68, s69")
        e(f"v_lshlrev_b32 v1, 7, v0")
        fl = ["", " nt", " sc0 nt", " nt sc1", " sc0 nt sc1", " sc0", " sc1"][opts["wo_fl"]]
        if opts["wo_full"]:
            for i in range(7):
                e(f"buffer_load_dwordx4 {vr(DUM,4)}, v{VL}, {srd(SWO)}, s68 offen{fl}"); vm.add("pf"); e("s_add_u32 s68, s68, 1024")
        else:
            e(f"buffer_load_dword v{DUM}, v1, {srd(SWO)}, s68 offen{fl}"); vm.add("pf")
    miss = [(k_load, n) for n in range(16)] + [(v_load, n) for n in range(16)]
    if opts["pf"]: miss.insert(int(opts["wo_pos"]), (lambda n: wo_pf(), 0))
    def do_miss(cnt):
        for _ in range(cnt):
            if miss: f, n = miss.pop(0); f(n)
    e(f"v_lshlrev_b32 v{VL}, 4, v0")
    if not opts['rf']: do_miss(opts["m_pre"])
    for r in range(4):
        e(f"v_xor_b32 v1, {r<<2}, v0"); e(f"v_lshlrev_b32 v1, 4, v1"); e(f"v_add_u32 v{VQ+r}, {r*7168}, v1")
    e("v_lshrrev_b32 v2, 3, v0"); e("v_mul_u32_u24 v2, 896, v2"); e("v_and_b32 v3, 7, v0"); e("v_lshrrev_b32 v4, 4, v0")
    for n in range(2):
        e(f"v_add_u32 v5, {4*(n&1)}, v4"); e("v_xor_b32 v5, v5, v3"); e("v_lshl_add_u32 v5, v5, 4, v2")
        e(f"v_add_u32 v{VX+n}, {n*6144}, v5")
    S_QB, S_XB, S_LQ, S_LX, S_OB, S_LO = 4, 5, 30, 31, 62, 63
    e(f"s_lshl_b32 s{S_QB}, s{S_LW}, 15")
    e(f"s_lshl_b32 s{S_LQ}, s{S_LW}, 12")
    e(f"s_mul_i32 s{S_XB}, s{S_LW}, 14336")
    e(f"s_lshl_b32 s{S_LX}, s{S_LW}, 11"); e(f"s_add_u32 s{S_LX}, s{S_LX}, {XR}")
    def q_stage(t):
        e(f"s_add_u32 m0, s{S_LQ}, {(t%NSQ)*16384}")
        e(f"s_add_u32 s{S_SOFF}, s{S_QB}, {16*t*8192}")
        for r in range(4):
            off = f" offset:{r*1024}" if r else ""
            e(f"buffer_load_dwordx4 v{VQ+r}, {srd(SWQ)}, s{S_SOFF} offen{off}{ntr} lds"); vm.add(("q", t))
    def x_chunk(X):
        e(f"s_add_u32 m0, s{S_LX}, {(X&1)*8192}")
        e(f"s_add_u32 s{S_SOFF}, s{S_XB}, {X*128}")
        for n in range(2):
            off = f" offset:{n*1024}" if n else ""
            e(f"buffer_load_dwordx4 v{VX+n}, {srd(SX)}, s{S_SOFF} offen{off}{ntx} lds"); vm.add(("x", X))
    OSL = [98304, 114688, 131072, 147456, 0, 16384]
    def o_stage(t):
        e(f"s_add_u32 m0, s{S_LQ}, {OSL[t%6]}")
        e(f"s_add_u32 s{S_SOFF}, s{S_OB}, {128*(t%4)*896 + (t//4)*128}")
        nto = " nt" if opts["nt_ringo"] else ""
        for n in range(4):
            off = f" offset:{n*1024}" if n else ""
            if not (opts["onoload"] and t > 5): e(f"buffer_load_dwordx4 v{VO+n}, {srd(SWO)}, s{S_SOFF} offen{off}{nto} lds"); vm.add(("o", t))
    x_chunk(0)
    if opts['rf'] == 2:
        q_stage(0); q_stage(1); do_pf(); q_stage(2); q_stage(3); x_chunk(1); q_stage(4); do_miss(opts["m_pre"])
    else:
        for t in range(4): q_stage(t)
        x_chunk(1); q_stage(4)
        if opts['rf']: do_pf(); do_miss(opts["m_pre"])
    do_miss(opts["m_post"])
    c("remaining address setup (off the critical path)")
    e("v_lshrrev_b32 v1, 3, v0"); e("v_mul_u32_u24 v1, 896, v1"); e("v_and_b32 v2, 7, v0"); e("v_bfe_u32 v3, v0, 4, 1")
    e("v_lshlrev_b32 v3, 2, v3"); e("v_xor_b32 v2, v2, v3"); e("v_lshl_add_u32 v1, v2, 4, v1")
    for n in range(4): e(f"v_add_u32 v{VO+n}, {n*6144}, v1")
    e(f"s_mul_i32 s{S_OB}, s{S_LW}, 28672")
    e("v_lshrrev_b32 v1, 5, v0"); e("v_and_b32 v2, 31, v0")
    for par in range(2):
        e(f"v_or_b32 v4, {2*par}, v1"); e("v_lshlrev_b32 v4, 2, v4"); e("v_xor_b32 v4, v4, v2"); e("v_lshlrev_b32 v4, 4, v4")
        e("v_lshl_add_u32 v4, v1, 9, v4"); e(f"v_add_u32 v{VW+par}, s{S_KV}, v4")
    acc = 0.0
    for t in range(0, 29):
        if t < 28: vm.wait([("q", t), ("x", t//4)])
        else:
            while miss and miss[0][0] is k_load: do_miss(1)
            vm.wait(["k"])
        e(f"s_barrier ; B{t}")
        if t >= 1 and t + 4 < 28: q_stage(t+4)
        if t >= 4 and t % 4 == 0 and t//4 + 1 <= 6: x_chunk(t//4 + 1)
        acc += opts["m_rate"] / 100.0
        n = int(acc); acc -= n; do_miss(n)
    do_miss(99)
    for n in range(16):
        if n % 4 == 0: vm.wait([("v", n+3)])
        e(f"ds_write_b128 v{VW+(n&1)}, {vr(VD+4*n,4)} offset:{n*1024}")
    e("s_waitcnt lgkmcnt(0)")
    e("s_barrier ; B29")
    for t in range(0, 4): o_stage(t)
    for t in range(0, 29):
        if t < 28: vm.wait([("o", t)])
        e(f"s_barrier ; B'{t}")
        if t == 0: o_stage(4); o_stage(5)
        if t >= 1 and t + 5 < 28: o_stage(t+5)
        if t == 22 and opts["flg"]:
            e(f"s_cmp_eq_u32 s{S_WAVE}, 7"); e("v_mov_b32 v1, 0"); e("v_mov_b32 v3, 0"); e("s_cselect_b64 exec, 1, 0")
            e(f"buffer_load_dword v3, v1, {srd(SDBG)}, 0 offen sc1"); vm.add("chk")
            e("s_mov_b64 exec, -1")
    if opts["flg"]:
        c("wave 7: all hand-off lines of the group were reset (normally true long ago)")
        e(f"s_cmp_lg_u32 s{S_WAVE}, 7"); e("s_cbranch_scc1 L_tail")
        e(f"s_mov_b32 s{S_CNT}, 0x40000")
        e("s_branch L_rchk")
        lab("L_rpoll")
        e(f"buffer_load_dword v3, v1, {srd(SDBG)}, 0 offen sc1")
        lab("L_rchk")
        e("s_waitcnt vmcnt(0)")
        e("v_readfirstlane_b32 s68, v3")
        e("s_cmp_ge_u32 s68, 8"); e("s_cbranch_scc1 L_rpolled")
        e("s_sleep 8")
        e(f"s_sub_u32 s{S_CNT}, s{S_CNT}, 1"); e(f"s_cmp_lg_u32 s{S_CNT}, 0"); e("s_cbranch_scc1 L_rpoll")
        lab("L_rpolled")
        fs = opts["fstride"]
        e(f"s_lshl_b32 s68, s{S_HP}, {fs}"); e("v_lshlrev_b32 v1, 2, v0"); e("v_add_u32 v1, s68, v1")
        e(f"s_lshl_b32 s68, s{S_HP}, 2"); e(f"v_lshlrev_b32 v4, {fs}, v0"); e("v_add_u32 v4, s68, v4")
        e("v_mov_b32 v2, 1")
    e("s_branch L_tail" if opts["fused"] else "s_endpgm")

def reduce_setup():
    e("s_mul_i32 s68, s64, 458752"); make_srd(SWS, 28, 68, 458752)
    e("s_mov_b32 s68, 0"); make_srd(SOUT, 24, 68, 1835008)
    e("v_lshlrev_b32 v1, 4, v0")
    e("s_and_b32 s69, s66, 1"); e("s_lshr_b32 s70, s66, 1")
    e("s_cmp_ge_u32 s70, 14"); e("s_cselect_b32 s71, 1, 0"); e("s_mul_i32 s72, s71, 14"); e("s_sub_u32 s70, s70, s72")
    e("s_and_b32 s72, s64, 15"); e("s_lshr_b32 s73, s64, 4")
    e("s_lshl_b32 s72, s72, 1"); e("s_add_u32 s72, s72, s71"); e("s_mul_i32 s72, s72, 57344")
    e("s_mul_i32 s73, s73, 896"); e("s_add_u32 s72, s72, s73"); e("s_lshl_b32 s70, s70, 6"); e("s_add_u32 s72, s72, s70")
    e("s_lshl_b32 s69, s69, 4"); e("s_add_u32 s72, s72, s69")
    e("v_and_b32 v2, 31, v0"); e("v_mul_u32_u24 v2, 1792, v2"); e("v_lshrrev_b32 v3, 5, v0"); e("v_lshl_add_u32 v2, v3, 5, v2")
    e("s_lshl_b32 s68, s66, 10")

def reduce_body(fl):
    for j in range(8):
        e(f"buffer_load_dwordx4 {vr(8+4*j,4)}, v1, {srd(SWS)}, s68 offen{fl}")
        if j < 7: e("s_add_u32 s68, s68, 57344")
    for j in range(8):
        e(f"s_waitcnt vmcnt({7-j})")
        for i in range(4):
            if j == 0:
                e(f"v_lshlrev_b32 v{40+2*i}, 16, v{8+i}"); e(f"v_and_b32 v{41+2*i}, 0xffff0000, v{8+i}")
            else:
                e(f"v_lshlrev_b32 v4, 16, v{8+4*j+i}"); e(f"v_and_b32 v5, 0xffff0000, v{8+4*j+i}")
                e(f"v_add_f32 v{40+2*i}, v{40+2*i}, v4"); e(f"v_add_f32 v{41+2*i}, v{41+2*i}, v5")
    for i in range(4): e(f"v_cvt_pk_bf16_f32 v{48+i}, v{40+2*i}, v{41+2*i}")
    e(f"buffer_store_dwordx4 v[48:51], v2, {srd(SOUT)}, s72 offen")

def reduce_kernel():
    lab("reduce_kernel")
    e("s_cmp_ge_u32 s2, 256"); e("s_cbranch_scc1 R_end")
    e("s_load_dwordx2 s[24:25], s[0:1], 80")
    e("s_load_dwordx2 s[28:29], s[0:1], 96")
    e("v_lshrrev_b32 v1, 6, v0"); e("v_and_b32 v0, 63, v0"); e("s_nop 0"); e("v_readfirstlane_b32 s3, v1")
    e("s_lshr_b32 s64, s2, 3"); e("s_and_b32 s65, s2, 7")
    e("s_mul_i32 s66, s65, 7"); e("s_add_u32 s66, s66, s3")
    e("s_waitcnt lgkmcnt(0)")
    reduce_setup()
    reduce_body("")
    lab("R_end")
    e("s_endpgm")

def kd(name, vg, sg=102):
    return f""".amdhsa_kernel {name}
  .amdhsa_next_free_vgpr {vg}
  .amdhsa_next_free_sgpr {sg}
  .amdhsa_accum_offset {(vg+3)//4*4}
  .amdhsa_group_segment_fixed_size 0
  .amdhsa_kernarg_size 104
  .amdhsa_user_sgpr_count 2
  .amdhsa_user_sgpr_kernarg_segment_ptr 1
  .amdhsa_system_sgpr_workgroup_id_x 1
.end_amdhsa_kernel"""

MK = NAME + "_kernel" if opts["fused"] else "main_kernel"
hdr = "; Fused 2-branch cached-MHA block (Q-proj, attention, out-proj) for gfx950 -- generated by gen/gen.py\n"
if opts["fused"]: hdr += "; @launch grid=(256,1,1) block=(512,1,1) lds=163840\n"
else: hdr += "; @launch kernel=main_kernel grid=(256,1,1) block=(512,1,1) lds=163840\n; @launch kernel=reduce_kernel grid=(256,1,1) block=(448,1,1) lds=0\n"
hdr += '.amdgcn_target "amdgcn-amd-amdhsa--gfx950"\n.text'
out = [hdr, f".globl {MK}", ".p2align 8", f".type {MK},@function"]
main_kernel(); out += L; L.clear()
if not opts["fused"]:
    out += [".globl reduce_kernel", ".p2align 8", ".type reduce_kernel,@function"]
    reduce_kernel(); out += L; L.clear()
out += ['.section .rodata,"a"', ".p2align 6", kd(MK, 256)]
if not opts["fused"]: out += [".p2align 6", kd("reduce_kernel", 56)]
open(sys.argv[1], "w").write("\n".join(out) + "\n")
```

```python
import sys
NAME = "concat_heads__mha_block_cached__mha_block_cached__near_ridge"
opts = dict(pl=2, rowmap=1, er=0, bq=1, bo=1, nreg=0, r0=7, rstep=2, rpre=4, wil=0, pvx=-1, qs=9, dry=0, rot=0, init4=1, stag=0, k0=0, k1=7, k2=13, k3=19, v0=0, v1=7, v2=13, v3=19, deep=0, kw_at=24, rf=1, flg=1, tlbw=1, fstride=8, st_fl=0, sleep=1, fused=1, stamps=0, nt_kv=1, delay_kv=0, pf=1, pf_at=12, noread=0, nomfma=0, noprio=0, nokv=0, nt_pf=0, nt_ring=0, nt_x=0, m_pre=0, m_post=0, m_rate=130, wo_pos=32, wo_fl=0, wo_full=0, onoread=0, onomfma=0, onoload=0, nt_ringo=0)
for a in sys.argv[2:]:
    k, v = a.split("="); opts[k] = int(v)
L = []
def e(s): L.append("    " + s)
def lab(s): L.append(s + ":")
def c(s): L.append("    ; " + s)
def vr(a, n): return f"v[{a}:{a+n-1}]"

DEEP = opts['deep']
RING_Q = 0; NSQ = 8 if DEEP else 5; XR = 131072 if DEEP else 81920; KR = 65536 if DEEP else 98304; NXS = 4 if DEEP else 2; VR = 0; RING_O = 65536; NSO = 6; EX = 0
S_WAVE = 3
SX, SK, SV, SWQ, SWO, SWS, SDBG, SOUT = 32, 36, 40, 44, 48, 52, 56, 60
S_BR, S_B, S_HP, S_PAIR = 64, 65, 66, 67
S_T0, S_T1, S_T2, S_T3 = 68, 69, 70, 71
S_SLOT, S_CNT, S_SOFF, S_C = 72, 73, 74, 75
SB = 78
SFLG = 16
def srd(n): return f"s[{n}:{n+3}]"

class VM:
    def __init__(s): s.ops = []
    def add(s, tag):
        s.ops.append(tag)
        if len(s.ops) > 60: e("s_waitcnt vmcnt(59)"); s.ops = s.ops[-59:]
    def wait(s, tags):
        idx = max([i for i, t in enumerate(s.ops) if t in tags], default=-1)
        n = len(s.ops) - 1 - idx
        assert n <= 63
        if idx >= 0:
            e(f"s_waitcnt vmcnt({n})")
            s.ops = s.ops[idx+1:]

def stamp(i):
    if opts["stamps"]:
        e(f"s_memtime s[{78+2*i}:{79+2*i}]" if i else "s_memtime s[78:79]") if False else e(f"s_memtime s[{SB+2*i}:{SB+1+2*i}]")

def make_srd(n, plo, add_lo, nrec):
    e(f"s_add_u32 s{n}, s{plo}, s{add_lo}")
    e(f"s_addc_u32 s{n+1}, s{plo+1}, 0")
    e(f"s_and_b32 s{n+1}, s{n+1}, 0xffff")
    if isinstance(nrec, int): e(f"s_mov_b32 s{n+2}, {nrec}")
    else: e(f"s_mov_b32 s{n+2}, {nrec}")
    e(f"s_mov_b32 s{n+3}, 0x20000")

def decode_wg():
    e("s_and_b32 s68, s2, 7")
    e("s_lshr_b32 s69, s2, 3")
    e(f"s_lshr_b32 s{S_BR}, s68, 2")
    e(f"s_and_b32 s{S_PAIR}, s69, 1")
    e(f"s_lshr_b32 s{S_B}, s69, 1")
    e("s_and_b32 s68, s68, 3")
    e("s_lshl_b32 s68, s68, 1")
    e(f"s_add_u32 s{S_HP}, s68, s{S_PAIR}")

def main_kernel():
    lab(MK)
    e("s_cmp_ge_u32 s2, 256")
    e("s_cbranch_scc1 L_end")
    e("s_load_dwordx16 s[4:19], s[0:1], 0")
    e("s_load_dwordx8 s[20:27], s[0:1], 64")
    e("s_load_dwordx2 s[28:29], s[0:1], 96")
    stamp(0)
    e("v_lshrrev_b32 v1, 6, v0")
    e("v_and_b32 v0, 63, v0")
    e("s_nop 0")
    e(f"v_readfirstlane_b32 s{S_WAVE}, v1")
    decode_wg()
    e("s_waitcnt lgkmcnt(0)")
    e(f"s_cmp_eq_u32 s{S_BR}, 0")
    e("s_cselect_b64 s[4:5], s[4:5], s[14:15]")
    e("s_cselect_b64 s[6:7], s[6:7], s[16:17]")
    e("s_cselect_b64 s[8:9], s[8:9], s[18:19]")
    e("s_cselect_b64 s[10:11], s[10:11], s[20:21]")
    e("s_cselect_b64 s[12:13], s[12:13], s[22:23]")
    if opts["stamps"]: e("s_memrealtime s[14:15]")
    e(f"s_mul_i32 s68, s{S_B}, 57344"); make_srd(SX, 4, 68, 57344)
    e(f"s_lshl_b32 s68, s{S_B}, 19"); e(f"s_lshl_b32 s69, s{S_HP}, 16"); e("s_add_u32 s68, s68, s69")
    make_srd(SK, 6, 68, 65536); make_srd(SV, 8, 68, 65536)
    e(f"s_lshl_b32 s68, s{S_HP}, 10"); e("s_sub_u32 s69, 3670016, s68"); make_srd(SWQ, 10, 68, "s69")
    e(f"s_mul_i32 s68, s{S_HP}, 458752"); make_srd(SWO, 12, 68, 458752)
    e(f"s_lshl_b32 s68, s{S_BR}, 4"); e(f"s_add_u32 s68, s68, s{S_B}"); e("s_lshl_b32 s68, s68, 3")
    e(f"s_add_u32 s68, s68, s{S_HP}"); e("s_mul_i32 s68, s68, 57344"); make_srd(SWS, 28, 68, 57344)
    if opts["flg"]:
        fs = opts["fstride"]
        e(f"s_lshl_b32 s68, s{S_BR}, 4"); e(f"s_add_u32 s68, s68, s{S_B}"); e("s_lshl_b32 s68, s68, 3")
        make_srd(SDBG, 26, 68, 4)
        e(f"s_lshl_b32 s68, s68, {fs}"); e("s_add_u32 s68, s68, 0x4000000"); make_srd(SFLG, 28, 68, 8 << fs)
    e(f"s_cmp_lt_u32 s{S_WAVE}, 4"); e("s_cbranch_scc1 L_compute")
    loader()
    lab("L_compute")
    compute()
    lab("L_end")
    e("s_endpgm")

MF = "v_mfma_f32_32x32x16_bf16"
def compute():
    c("================= compute waves 0..3 =================")
    ACC = 0; AF = 128; XF = 192; AQB = 200; AQC = 204; AX = 208; AXT = 209; DUM = 210
    AK = 240; AV = 241; AO = 245; AOC = 246; AEW = 247; AER = 248; AST = 249; T0 = 250; T1 = 251; T2 = 252; T3 = 253; T4 = 254
    if not opts["noprio"]: e("s_setprio 1")
    S_HH, S_QH = 76, 77
    e(f"s_lshr_b32 s{S_HH}, s{S_WAVE}, 1"); e(f"s_and_b32 s{S_QH}, s{S_WAVE}, 1")
    c("lane decomposition: G=l>>4 r=(l>>2)&3 cc=l&3")
    e(f"v_bfe_u32 v1, v0, 2, 2")
    e(f"v_lshrrev_b32 v2, 5, v0")
    e(f"v_bfe_u32 v3, v0, 4, 1")
    e(f"v_and_b32 v4, 1, v0")
    e(f"v_bfe_u32 v5, v0, 1, 1")
    e(f"v_and_b32 v6, 31, v0")
    e("v_lshlrev_b32 v7, 13, v2"); e("v_lshl_add_u32 v7, v1, 10, v7")
    e("v_lshl_add_u32 v7, v3, 5, v7"); e("v_lshl_add_u32 v7, v4, 4, v7"); e("v_lshl_add_u32 v7, v5, 3, v7")
    e(f"s_lshl_b32 s68, s{S_HH}, 9"); e("v_add_u32 v7, s68, v7")
    for d in range(4):
        e(f"v_xor_b32 v8, {d}, v1"); e(f"v_lshl_add_u32 v{AQB+d}, v8, 6, v7")
    e("v_bfe_u32 v8, v0, 1, 3"); e("v_xor_b32 v8, v8, v2"); e("v_lshlrev_b32 v8, 4, v8"); e("v_lshl_add_u32 v8, v6, 7, v8")
    e(f"s_lshl_b32 s68, s{S_QH}, 12"); e(f"s_add_u32 s68, s68, {XR}"); e(f"v_add_u32 v{AX}, s68, v8")
    e("v_and_b32 v8, 15, v0"); e("v_xor_b32 v8, v8, v2"); e("v_lshlrev_b32 v8, 4, v8"); e("v_lshl_add_u32 v8, v6, 9, v8")
    e(f"s_lshl_b32 s69, s{S_HH}, 15"); e(f"s_add_u32 s68, s69, {KR}"); e(f"v_add_u32 v{AK}, s68, v8")
    e("v_lshlrev_b32 v7, 11, v2"); e("v_lshl_add_u32 v7, v1, 9, v7"); e("v_lshl_add_u32 v7, v3, 5, v7")
    e("v_and_b32 v8, 3, v0"); e("v_lshl_add_u32 v7, v8, 3, v7"); e("v_add_u32 v7, s69, v7")
    for d in range(4):
        e(f"v_xor_b32 v8, {d}, v1"); e(f"v_lshl_add_u32 v{AV+d}, v8, 6, v7")
    e("v_lshl_add_u32 v7, v2, 2, v1"); e("v_lshlrev_b32 v7, 7, v7")
    e("v_lshl_add_u32 v7, v4, 5, v7"); e("v_lshl_add_u32 v7, v3, 4, v7"); e("v_lshl_add_u32 v7, v5, 3, v7")
    e("v_lshrrev_b32 v8, 1, v1"); e(f"v_xor_b32 v8, s{S_HH}, v8"); e(f"v_lshl_add_u32 v{AO}, v8, 6, v7")
    e("v_lshlrev_b32 v7, 4, v0")
    e(f"s_lshl_b32 s68, s{S_QH}, 14"); e(f"s_lshl_b32 s69, s{S_HH}, 15")
    e(f"s_sub_u32 s70, 65536, s69"); e("s_add_u32 s70, s70, s68"); e(f"v_add_u32 v{AEW}, s70, v7")
    e(f"s_add_u32 s70, 32768, s69"); e("s_add_u32 s70, s70, s68"); e(f"v_add_u32 v{AER}, s70, v7")
    e(f"s_mul_i32 s68, s{S_QH}, 14"); e(f"s_add_u32 s68, s68, s{S_HH}"); e("s_lshl_b32 s68, s68, 11")
    e(f"v_add_u32 v{AST}, s68, v7")
    e(f"s_cmp_eq_u32 s{S_HH}, 0"); e("s_cselect_b64 s[8:9], -1, 0")
    if opts["flg"]:
        c("wave 0: reset this workgroup's hand-off line in ws")
        e(f"s_cmp_lg_u32 s{S_WAVE}, 0"); e("s_cbranch_scc1 L_noreset")
        e(f"s_lshl_b32 s68, s{S_HP}, {opts['fstride']}")
        e(f"v_lshlrev_b32 v8, {2 if opts['er'] else opts['pl']}, v0"); e("v_mov_b32 v9, 0")
        if not opts["er"]: e("s_mov_b64 exec, 0xff")
        e(f"buffer_store_dword v9, v8, {srd(SFLG)}, s68 offen sc1")
        e("s_mov_b64 exec, -1")
        lab("L_noreset")
    if opts["tlbw"]:
        c("wave 1: touch the partial slab / output pages (address translation warm-up; values unused)")
        e(f"s_cmp_lg_u32 s{S_WAVE}, 1"); e("s_cbranch_scc1 L_notlb")
        e(f"s_mul_i32 s68, s{S_B}, 114688"); make_srd(SOUT, 24, 68, 57344)
        e("v_mov_b32 v9, 0")
        e(f"buffer_load_dword v{T3}, v9, {srd(SWS)}, 0 offen sc1")
        e(f"buffer_load_dword v{T4}, v9, {srd(SOUT)}, 0 offen sc1")
        lab("L_notlb")
    e("s_mov_b32 s11, 0")
    if opts["dry"]:
        c("instruction-cache warm-up: run the attention section once with all lanes off")
        e("s_mov_b32 s11, 1"); e("s_mov_b64 exec, 0"); e("s_branch L_S")
        lab("L_dryret")
        e("s_mov_b32 s11, 0"); e("s_mov_b64 exec, -1")
    c("zero Q accumulators")
    for i in range(128): e(f"v_mov_b32 v{i}, 0")
    def q_reads(buf, piece):
        r = [f"ds_read_b128 {vr(XF+4*buf,4)}, v{AXT}"]
        for dt in range(8):
            for u in range(2):
                r.append(f"ds_read_b64_tr_b16 {vr(AF+32*buf+4*dt+2*u,2)}, v{AQC+(dt&3)} offset:{u*4096+(dt>>2)*256}")
        return r
    e(f"s_mov_b32 s{S_SLOT}, 0")
    for d in range(4): e(f"v_mov_b32 v{AQC+d}, v{AQB+d}")
    e(f"v_mov_b32 v{AXT}, v{AX}")
    stamp(1)
    e("s_barrier ; B0")
    stamp(2)
    for r in q_reads(0, 0): e(r)
    def q_upd(p):
        e(f"s_add_u32 s{S_SLOT}, s{S_SLOT}, 16384"); e(f"s_cmp_eq_u32 s{S_SLOT}, {NSQ*16384}"); e(f"s_cselect_b32 s{S_SLOT}, 0, s{S_SLOT}")
        if p % 4 == 3:
            if DEEP: e(f"v_add_u32 v{AX}, 0x2000, v{AX}"); e(f"v_and_b32 v{AX}, 0x27fff, v{AX}")
            else: e(f"v_xor_b32 v{AX}, 0x2000, v{AX}")
        e(f"v_xor_b32 v{AXT}, {((p+1)&3)<<5}, v{AX}")
        for d in range(4): e(f"v_add_u32 v{AQC+d}, s{S_SLOT}, v{AQB+d}")
    q_upd(0)
    e(f"s_mov_b32 s{S_CNT}, 7")
    lab("L_qloop")
    for p in range(4):
        cur = p & 1; nxt = cur ^ 1
        m = [f"{MF} {vr(16*dt,16)}, {vr(AF+32*cur+4*dt,4)}, {vr(XF+4*cur,4)}, {vr(16*dt,16)}" for dt in range(8)]
        rd = q_reads(nxt, (p+1) & 3)
        e("s_waitcnt lgkmcnt(14)")
        e(m[0])
        e("s_waitcnt lgkmcnt(0)")
        if opts["bq"] == 1 or p & 1: e("s_barrier")
        k = 0
        if opts["noread"]: rd = []
        for j in range(1, 8):
            for _ in range(3 if j > 1 else 1):
                if k < len(rd): e(rd[k]); k += 1
            if j == 7: q_upd(p + 1)
            if not opts["nomfma"]: e(m[j])
        assert k == len(rd)
    e(f"s_sub_u32 s{S_CNT}, s{S_CNT}, 1"); e(f"s_cmp_lg_u32 s{S_CNT}, 0"); e("s_cbranch_scc1 L_qloop")
    stamp(3)
    if opts["flg"] or opts["tlbw"]: e("s_waitcnt vmcnt(0)")
    if opts["flg"]:
        e(f"s_cmp_lg_u32 s{S_WAVE}, 0"); e("s_cbranch_scc1 L_nocnt")
        e(f"v_mov_b32 v{T3}, 0"); e(f"v_mov_b32 v{T4}, 1")
        e("s_mov_b64 exec, 1")
        e(f"buffer_atomic_add v{T4}, v{T3}, {srd(SDBG)}, 0 offen sc1")
        e("s_mov_b64 exec, -1")
        lab("L_nocnt")
    lab("L_S")
    c("---- S^T = K Q^T")
    QP = 128; KF = 192; SA = 208
    e("s_waitcnt lgkmcnt(0)")
    def kslot(n): return (KF + 4*(n&7)) if (n&7) < 4 else 4*((n&7)-4)
    def k_read(n):
        x = n >> 1; kt = n & 1
        return f"ds_read_b128 {vr(kslot(n),4)}, v{T0+(x&1)} offset:{kt*16384+(x>>3)*256}"
    def k_addr(x): return f"v_xor_b32 v{T0+(x&1)}, {(x&7)<<5}, v{AK}"
    def cvt_tile(src, dst):
        return [f"v_cvt_pk_bf16_f32 v{dst+i}, v{src+2*i}, v{src+2*i+1}" for i in range(8)]
    for n in range(4):
        if n % 2 == 0: e(k_addr(n >> 1))
        e(k_read(n))
    for x in cvt_tile(0, QP): e(x)
    for n in range(4, 8):
        if n % 2 == 0: e(k_addr(n >> 1))
        e(k_read(n))
    for n in range(32):
        dt = n >> 2; s_ = (n >> 1) & 1; kt = n & 1
        if n % 4 == 0: cv = cvt_tile(16*(dt+1), QP+8*(dt+1)) if dt < 7 else []
        e(f"s_waitcnt lgkmcnt({min(7, 31-n)})")
        cin = "0" if n < 2 else vr(SA+16*kt, 16)
        e(f"{MF} {vr(SA+16*kt,16)}, {vr(kslot(n),4)}, {vr(QP+8*dt+4*s_,4)}, {cin}")
        if n + 8 < 32:
            if n % 2 == 0: e(k_addr((n+8) >> 1))
            e(k_read(n+8))
        for _ in range(3 if n % 4 < 2 else 2 if n % 4 == 2 else 0):
            if cv: e(cv.pop(0))
    stamp(4)
    c("---- softmax over keys (32 in-lane values + partner half)")
    PP = 192
    e("s_nop 7"); e("s_nop 3")
    e(f"v_max3_f32 v{T0}, v{SA}, v{SA+1}, v{SA+2}")
    e(f"v_max3_f32 v{T1}, v{SA+16}, v{SA+17}, v{SA+18}")
    for i in range(3, 15, 2):
        e(f"v_max3_f32 v{T0}, v{T0}, v{SA+i}, v{SA+i+1}")
        e(f"v_max3_f32 v{T1}, v{T1}, v{SA+16+i}, v{SA+16+i+1}")
    e(f"v_max3_f32 v{T0}, v{T0}, v{SA+15}, v{SA+31}")
    e(f"v_max_f32 v{T0}, v{T0}, v{T1}")
    e(f"v_mov_b32 v{T1}, v{T0}"); e("s_nop 1")
    e(f"v_permlane32_swap_b32 v{T0}, v{T1}"); e("s_nop 1")
    e(f"v_max_f32 v{T0}, v{T0}, v{T1}")
    e("s_mov_b32 s12, 0x3db8aa3b ; 0.0625*log2(e)")
    e(f"v_mul_f32 v{T0}, s12, v{T0}")
    for i in range(0, 32, 2):
        e(f"v_pk_fma_f32 {vr(SA+i,2)}, {vr(SA+i,2)}, s[12:13], {vr(T0,2)} op_sel_hi:[1,0,0] neg_lo:[0,0,1] neg_hi:[0,0,1]")
        if i >= 2: e(f"v_exp_f32 v{SA+i-2}, v{SA+i-2}"); e(f"v_exp_f32 v{SA+i-1}, v{SA+i-1}")
        if i == 6: e(f"v_pk_add_f32 {vr(T2,2)}, {vr(SA,2)}, {vr(SA+2,2)}")
        if i > 6: e(f"v_pk_add_f32 {vr(T2,2)}, {vr(T2,2)}, {vr(SA+i-4,2)}")
    e(f"v_exp_f32 v{SA+30}, v{SA+30}"); e(f"v_exp_f32 v{SA+31}, v{SA+31}")
    e(f"v_pk_add_f32 {vr(T2,2)}, {vr(T2,2)}, {vr(SA+28,2)}"); e("s_nop 0")
    e(f"v_pk_add_f32 {vr(T2,2)}, {vr(T2,2)}, {vr(SA+30,2)}")
    e(f"v_add_f32 v{T0}, v{T2}, v{T3}")
    e(f"v_mov_b32 v{T1}, v{T0}"); e("s_nop 1")
    e(f"v_permlane32_swap_b32 v{T0}, v{T1}"); e("s_nop 1")
    e(f"v_add_f32 v{T0}, v{T0}, v{T1}")
    e(f"v_rcp_f32 v{T0}, v{T0}"); e("s_nop 0")
    for i in range(16):
        e(f"v_pk_mul_f32 {vr(SA+2*i,2)}, {vr(SA+2*i,2)}, {vr(T0,2)} op_sel_hi:[1,0]")
        if i: e(f"v_cvt_pk_bf16_f32 v{PP+i-1}, v{SA+2*i-2}, v{SA+2*i-1}")
    e(f"v_cvt_pk_bf16_f32 v{PP+15}, v{SA+30}, v{SA+31}")
    stamp(5)
    if opts["dry"]: e("s_cmp_eq_u32 s11, 1"); e("s_cbranch_scc1 L_nob29")
    e("s_barrier")
    lab("L_nob29")
    stamp(6)
    c("---- O^T = V^T P^T")
    VF = 208; OP = 128
    seq = [(2*dp+o, ks) for dp in range(4) for ks in range(4) for o in range(2)]
    def v_reads(n):
        dt, ks = seq[n]
        return [f"ds_read_b64_tr_b16 {vr(VF+4*(n&7)+2*u,2)}, v{AV+(dt&3)} offset:{(dt>>2)*256+(16*ks+8*u)*512}" for u in range(2)]
    PFD = 7
    for n in range(PFD):
        for r in v_reads(n): e(r)
    e(f"s_cmp_eq_u32 s{S_HH}, 0"); e("s_cbranch_scc0 L_pv1")
    for hh in range(2):
        if hh: lab("L_pv1")
        lg = []
        for n in range(PFD): lg += [n, n]
        def ex_write(dt):
            if hh: return
            e(f"ds_write_b128 v{AEW}, {vr(OP+8*dt,4)} offset:{2*dt*1024}"); e(f"ds_write_b128 v{AEW}, {vr(OP+8*dt+4,4)} offset:{(2*dt+1)*1024}")
            lg.extend(["w", "w"])
        for n, (dt, ks) in enumerate(seq):
            idx = max(i for i, t in enumerate(lg) if t == n); cnt = len(lg) - 1 - idx
            if opts["pvx"] < 2: e(f"s_waitcnt lgkmcnt({min(cnt,15)})")
            del lg[:idx+1]
            cin = "0" if ks == 0 else vr(16*dt, 16)
            e(f"{MF} {vr(16*dt,16)}, {vr(VF+4*(n&7),4)}, {vr(PP+4*ks,4)}, {cin}")
            if n + PFD < len(seq):
                for r in v_reads(n+PFD):
                    if opts["pvx"] < 2: e(r)
                    lg.append(n+PFD)
            if n >= 8 and opts["pvx"] in (0, -1):
                tl = 2*(n >> 3) - 2 + ((n >> 2) & 1)
                cv = cvt_tile(16*tl, OP+8*tl); e(cv[2*(n&3)]); e(cv[2*(n&3)+1])
                if n % 4 == 0 and tl >= 1 and opts["pvx"] == 0: ex_write(tl-1)
        if opts["pvx"] == -1:
            for tl in range(5): ex_write(tl)
        ex_write(5)
        e("s_nop 3")
        for x in cvt_tile(16*6, OP+48): e(x)
        ex_write(6)
        e("s_nop 3")
        for x in cvt_tile(16*7, OP+56): e(x)
        ex_write(7)
        if hh == 0: e("s_branch L_pvdone")
    lab("L_pvdone")
    e("s_waitcnt lgkmcnt(0)")
    if opts["dry"]: e("s_cmp_eq_u32 s11, 1"); e("s_cbranch_scc1 L_dryret")
    stamp(7)
    e("s_barrier")
    c("---- out projection: 7 passes of one 128-byte column block, K=512")
    PAR = 0; ACA = 64; ACB = 96; ACQ = 80
    sc = [" sc1", " sc0 sc1", " nt sc1", ""][opts["st_fl"]]
    S_ST = 10
    def o_rd(j, buf):
        return [f"ds_read_b64_tr_b16 {vr(buf+4*j+2*u,2)}, v{AOC} offset:{j*2048+u*1024}" for u in range(2)]
    def store_tile(acc):
        adds = [f"v_pk_add_f32 {vr(acc+2*i,2)}, {vr(acc+2*i,2)}, {vr(ACQ+2*i,2)}" for i in range(8)] if opts["qs"] == 3 else [f"v_add_f32 v{acc+i}, v{acc+i}, v{ACQ+i}" for i in range(16)]
        if opts["qs"] > 31: adds = []
        return adds + cvt_tile(acc, acc) + [
                                    f"buffer_store_dwordx4 {vr(acc,4)}, v{AST}, {srd(SWS)}, s{S_ST} offen{sc}",
                                    f"buffer_store_dwordx4 {vr(acc+4,4)}, v{AST}, {srd(SWS)}, s{S_ST} offen offset:1024{sc}",
                                    f"s_add_u32 s{S_ST}, s{S_ST}, 4096"] + ([f"s_cmp_eq_u32 s{S_ST}, {7*4096}", f"s_cselect_b32 s{S_ST}, 0, s{S_ST}"] if opts["rot"] else [])
    WF = [192, 16*7]
    def wf(buf, j):
        if buf == 0: return 192 + 4*j
        return 112 + 4*j if j < 4 else 224 + 4*(j-4)
    def o_reads(buf):
        return [f"ds_read_b64_tr_b16 {vr(wf(buf,j)+2*u,2)}, v{AOC} offset:{j*2048+u*1024}" for j in range(8) for u in range(2)]
    def o_upd():
        e(f"s_add_u32 s{S_SLOT}, s{S_SLOT}, 16384"); e(f"s_cmp_eq_u32 s{S_SLOT}, 163840"); e(f"s_cselect_b32 s{S_SLOT}, 0, s{S_SLOT}")
        e(f"s_cmp_eq_u32 s{S_SLOT}, 32768"); e(f"s_cselect_b32 s{S_SLOT}, 98304, s{S_SLOT}")
        e(f"v_add_u32 v{AOC}, s{S_SLOT}, v{AO}")
    def o_pass(hh, acc, prev, first):
        for st in range(4):
            cur = st & 1
            if st == 0: extra = store_tile(prev) if prev is not None else []
            exr = []
            if first and hh == 0 and st in (1,):
                exr = [f"ds_read_b128 {vr(PAR+4*i,4)}, v{AER} offset:{i*1024}" for i in range(16)]
            if first and hh == 1 and st == 0 and opts["wil"]:
                exr = [f"ds_write_b128 v{AEW}, {vr(OP+4*i,4)} offset:{i*1024}" for i in range(16)]
            rd = o_reads(cur ^ 1) if not opts['onoread'] else []
            for j in range(8):
                kk = 8*st + j
                b = (OP if (kk >> 4) == hh else PAR) + 4*(kk & 15)
                ac = ACQ if (kk & 1 and kk >= opts["qs"]) else acc
                cin = "0" if kk in (0, opts["qs"]) else vr(ac, 16)
                if j == 0: e("s_waitcnt lgkmcnt(14)")
                e(f"{MF} {vr(ac,16)}, {vr(wf(cur,j),4)}, {vr(b,4)}, {cin}")
                if j == 0:
                    e("s_waitcnt lgkmcnt(0)")
                    if opts["bo"] == 1 or st & 1: e("s_barrier")
                if j < 7:
                    for _ in range(3 if (j % 3) != 2 else 2):
                        if exr: e(exr.pop(0))
                    for _ in range(1 if j == 0 else 3):
                        if rd: e(rd.pop(0))
                if j == 6: o_upd()
                if kk >= 1:
                    for _ in range((4 if j < 3 else 3) if opts["qs"] == 3 else 2):
                        if extra: e(extra.pop(0))
            assert not rd and not exr and (st < 2 or not extra), (rd, extra, exr)
    e(f"s_mov_b32 s{S_SLOT}, 98304"); e(f"v_add_u32 v{AOC}, s{S_SLOT}, v{AO}")
    e(f"s_mov_b32 s{S_ST}, 0"); e(f"s_mov_b32 s{S_CNT}, 3")
    if opts["er"]:
        e(f"v_mbcnt_lo_u32_b32 v{T0}, -1, 0"); e(f"v_lshlrev_b32 v{T0}, 8, v{T0}"); e(f"v_mov_b32 v{T1}, 1")
        e(f"s_lshl_b32 s12, s{S_HP}, 2"); e(f"s_add_u32 s12, s12, s{S_WAVE}"); e("s_lshl_b32 s12, s12, 2")
    if opts["rot"]:
        e(f"s_mul_i32 s6, s{S_B}, 37"); e("s_lshr_b32 s6, s6, 8"); e("s_mul_i32 s6, s6, 7"); e(f"s_sub_u32 s6, s{S_B}, s6"); e(f"s_lshl_b32 s{S_ST}, s6, 12")
    e(f"s_cmp_eq_u32 s{S_HH}, 0"); e("s_cbranch_scc0 L_oh1")
    for hh in range(2):
        if hh == 1:
            lab("L_oh1")
            for i in range(8): e(f"ds_read_b128 {vr(PAR+4*i,4)}, v{AER} offset:{i*1024}")
        for r in o_reads(0): e(r)
        o_upd()
        if hh == 1:
            for i in range(8, 16): e(f"ds_read_b128 {vr(PAR+4*i,4)}, v{AER} offset:{i*1024}")
            if not opts["wil"]:
                for i in range(16): e(f"ds_write_b128 v{AEW}, {vr(OP+4*i,4)} offset:{i*1024}")
                e("s_waitcnt lgkmcnt(15)")
        o_pass(hh, ACA, None, True)
        lab(f"L_oloop{hh}")
        o_pass(hh, ACB, ACA, False)
        if opts["er"] == 1:
            c("last trip: passes 0..3 of this wave are at the coherence point -> hand-off flag A")
            e(f"s_cmp_lg_u32 s{S_CNT}, 1"); e(f"s_cbranch_scc1 L_noA{hh}")
            e("s_waitcnt vmcnt(2)"); e("s_mov_b64 exec, 0xff")
            e(f"buffer_store_dword v{T1}, v{T0}, {srd(SFLG)}, s12 offen sc1")
            e("s_mov_b64 exec, -1")
            lab(f"L_noA{hh}")
        o_pass(hh, ACA, ACB, False)
        e(f"s_sub_u32 s{S_CNT}, s{S_CNT}, 1"); e(f"s_cmp_lg_u32 s{S_CNT}, 0"); e(f"s_cbranch_scc1 L_oloop{hh}")
        if hh == 0: e("s_branch L_odone")
    lab("L_odone")
    stamp(8)
    e("s_nop 7"); e("s_nop 3")
    for x in store_tile(ACA): e(x)
    if opts["fused"]:
        e("s_waitcnt vmcnt(0)")
        stamp(9)
        if opts["er"]:
            e("s_mov_b64 exec, 0xff")
            e(f"buffer_store_dword v{T1}, v{T0}, {srd(SFLG)}, s12 offen offset:128 sc1")
            e("s_mov_b64 exec, -1")
            if opts["er"] == 1:
                e(f"s_cmp_eq_u32 s{S_WAVE}, 3"); e("s_cbranch_scc1 L_end")
                e(f"s_add_u32 s12, s{S_WAVE}, 4")
            else: e(f"s_mov_b32 s12, s{S_WAVE}")
            e("s_movk_i32 s13, 128")
            tail2()
        else: tail()
    else:
        dump_stamps(10)
        e("s_endpgm")

def dump_stamps(n):
    if opts["stamps"]:
        e(f"s_cmp_lg_u32 s{S_WAVE}, 0"); e("s_cbranch_scc1 L_end")
        e("s_waitcnt vmcnt(0)")
        stamp(n-1)
        e("s_waitcnt lgkmcnt(0)")
        e("s_memrealtime s[6:7]")
        e("s_lshl_b32 s68, s2, 6"); e("s_add_u32 s68, s68, 0x8000000"); make_srd(SDBG, 28, 68, 64)
        e("v_mov_b32 v1, 0")
        e("s_getreg_b32 s68, hwreg(HW_REG_XCC_ID)"); e("v_mov_b32 v2, s68"); e(f"buffer_store_dword v2, v1, {srd(SDBG)}, 0 offen offset:56")
        e("s_waitcnt lgkmcnt(0)")
        e("v_mov_b32 v2, s14"); e(f"buffer_store_dword v2, v1, {srd(SDBG)}, 0 offen offset:0")
        e("v_mov_b32 v2, s6"); e(f"buffer_store_dword v2, v1, {srd(SDBG)}, 0 offen offset:60")
        for i in range(1, n):
            e(f"s_sub_u32 s68, s{SB+2*i}, s{SB}"); e("v_mov_b32 v2, s68")
            e(f"buffer_store_dword v2, v1, {srd(SDBG)}, 0 offen offset:{4*i}")

def tail():
    lab("L_tail")
    c("================= cross-workgroup reduction =================")
    e("s_barrier")
    e("v_mbcnt_lo_u32_b32 v0, -1, 0"); e("v_mbcnt_hi_u32_b32 v0, -1, v0")
    if not opts["rowmap"]: e(f"s_lshl_b32 s64, s{S_BR}, 4"); e(f"s_add_u32 s64, s64, s{S_B}")
    e(f"s_cmp_lg_u32 s{S_WAVE}, 7"); e("s_cbranch_scc1 L_nopoll")
    if opts["flg"]:
        e("s_mov_b64 exec, 0xff")
        e(f"buffer_store_dword v2, v4, {srd(SFLG)}, 0 offen sc1")
        e(f"s_mov_b32 s{S_CNT}, 0x40000")
        lab("L_poll")
        e(f"buffer_load_dword v3, v1, {srd(SFLG)}, 0 offen sc1")
        e("s_waitcnt vmcnt(0)")
        e("v_cmp_eq_u32 vcc, 1, v3")
        e("s_cmp_eq_u32 vcc_lo, 0xff"); e("s_cbranch_scc1 L_polled")
        if opts["sleep"]: e(f"s_sleep {opts['sleep']}")
        e(f"s_sub_u32 s{S_CNT}, s{S_CNT}, 1"); e(f"s_cmp_lg_u32 s{S_CNT}, 0"); e("s_cbranch_scc1 L_poll")
    else:
        e("s_lshl_b32 s68, s64, 3"); make_srd(SDBG, 26, 68, 4)
        e("v_mov_b32 v1, 0"); e("v_mov_b32 v2, 1")
        e("s_mov_b64 exec, 1")
        e(f"buffer_atomic_add v2, v1, {srd(SDBG)}, 0 offen sc1")
        e(f"s_mov_b32 s{S_CNT}, 0x40000")
        lab("L_poll")
        e(f"buffer_load_dword v3, v1, {srd(SDBG)}, 0 offen sc1")
        e("s_waitcnt vmcnt(0)")
        e("v_readfirstlane_b32 s68, v3")
        e("s_cmp_ge_u32 s68, 8"); e("s_cbranch_scc1 L_polled")
        e(f"s_sleep {opts['sleep']}")
        e(f"s_sub_u32 s{S_CNT}, s{S_CNT}, 1"); e(f"s_cmp_lg_u32 s{S_CNT}, 0"); e("s_cbranch_scc1 L_poll")
    lab("L_polled")
    e("s_mov_b64 exec, -1")
    e("s_barrier")
    e("s_endpgm")
    lab("L_nopoll")
    if opts["rowmap"]: e(f"s_mov_b32 s12, s{S_WAVE}"); reduce_setup2()
    else:
        e(f"s_mul_i32 s66, s{S_HP}, 7"); e(f"s_add_u32 s66, s66, s{S_WAVE}")
        reduce_setup()
    e("s_barrier")
    stamp(10)
    reduce_body(" sc1")
    dump_stamps(12)
    e("s_endpgm")

def reduce_setup2():
    e(f"s_lshl_b32 s68, s{S_BR}, 4"); e(f"s_add_u32 s68, s68, s{S_B}")
    e("s_mul_i32 s68, s68, 458752"); make_srd(SWS, 28, 68, 458752)
    e("s_mov_b32 s68, 0"); make_srd(SOUT, 24, 68, 1835008)
    e("v_lshrrev_b32 v2, 4, v0"); e("v_bfe_u32 v3, v0, 3, 1"); e("v_and_b32 v4, 7, v0")
    e("v_lshlrev_b32 v1, 10, v2"); e("v_lshl_add_u32 v1, v3, 9, v1"); e("v_lshl_add_u32 v1, v4, 4, v1")
    e(f"s_lshr_b32 s69, s{S_HP}, 2"); e("s_mul_i32 s69, s69, 28672"); e(f"s_and_b32 s70, s{S_HP}, 3"); e("s_lshl_b32 s70, s70, 7")
    e("s_lshl_b32 s68, s12, 12"); e("s_add_u32 s68, s68, s69"); e("s_add_u32 s68, s68, s70")
    e("v_mul_u32_u24 v4, 1792, v4"); e("v_lshl_add_u32 v4, v3, 5, v4"); e("v_lshrrev_b32 v3, 1, v2"); e("v_lshl_add_u32 v4, v3, 6, v4")
    e("v_and_b32 v3, 1, v2"); e("v_lshl_add_u32 v2, v3, 4, v4")
    e(f"s_lshl_b32 s72, s{S_B}, 3"); e(f"s_add_u32 s72, s72, s{S_HP}"); e("s_mul_i32 s72, s72, 14336")
    e(f"s_mul_i32 s69, s{S_BR}, 896"); e("s_add_u32 s72, s72, s69"); e("s_lshl_b32 s69, s12, 7"); e("s_add_u32 s72, s72, s69")

def tail2():
    lab("L_tail2")
    c("================= cross-workgroup reduction: rows 8*hp..8*hp+7 of the group's tile, block s12 =================")
    e("v_mbcnt_lo_u32_b32 v0, -1, 0"); e("v_mbcnt_hi_u32_b32 v0, -1, v0")
    e(f"s_lshl_b32 s68, s{S_HP}, 8"); e("s_add_u32 s13, s13, s68")
    e("v_and_b32 v6, 31, v0"); e("v_lshlrev_b32 v6, 2, v6")
    e(f"buffer_load_dword v7, v6, {srd(SFLG)}, s13 offen sc1")
    reduce_setup2()
    e(f"s_mov_b32 s{S_CNT}, 0x40000")
    lab("L_poll2")
    e("s_waitcnt vmcnt(0)")
    e("v_cmp_ne_u32 vcc, 1, v7")
    e("s_cbranch_vccz L_polled2")
    if opts["sleep"]: e(f"s_sleep {opts['sleep']}")
    e(f"buffer_load_dword v7, v6, {srd(SFLG)}, s13 offen sc1")
    e(f"s_sub_u32 s{S_CNT}, s{S_CNT}, 1"); e(f"s_cmp_lg_u32 s{S_CNT}, 0"); e("s_cbranch_scc1 L_poll2")
    lab("L_polled2")
    stamp(10)
    reduce_body(" sc1")
    dump_stamps(12)
    e("s_endpgm")

def loader():
    lab("L_loader")
    c("================= loader waves 4..7 =================")
    S_LW = 76
    VQ, VX, VO, VK, VL, VW, VPF, DUM, VD = 8, 12, 16, 20, 28, 29, 32, 36, 64
    ntk = ["", " nt", " sc1", " sc0 sc1", " sc1 nt", " sc0 sc1 nt", " sc0", " sc0 nt"][opts["nt_kv"]]; ntp = " nt" if opts["nt_pf"] else ""; ntr = " nt" if opts["nt_ring"] else ""
    ntx = " nt" if opts["nt_x"] else ""
    vm = VM()
    e(f"s_sub_u32 s{S_LW}, s{S_WAVE}, 4")
    def do_pf():
        c("L2 line prefetch: Wq row (16t+b), x half")
        e("v_lshrrev_b32 v1, 3, v0"); e("v_and_b32 v2, 7, v0"); e("v_lshlrev_b32 v2, 7, v2"); e(f"v_lshl_add_u32 v{VPF}, v1, 17, v2")
        e(f"s_lshl_b32 s68, s{S_LW}, 20"); e(f"s_lshl_b32 s69, s{S_B}, 13"); e("s_add_u32 s68, s68, s69")
        if opts["pf"]: e(f"buffer_load_dword v{DUM}, v{VPF}, {srd(SWQ)}, s68 offen{ntp}"); vm.add("pf")
        e("v_and_b32 v1, 31, v0"); e("v_mul_u32_u24 v1, 896, v1"); e("v_lshrrev_b32 v2, 5, v0"); e(f"v_lshl_add_u32 v{VPF+1}, v2, 7, v1")
        e(f"s_mul_i32 s68, s{S_PAIR}, 28672"); e(f"s_lshl_b32 s69, s{S_LW}, 8"); e("s_add_u32 s68, s68, s69")
        if opts["pf"]: e(f"buffer_load_dword v{DUM}, v{VPF+1}, {srd(SX)}, s68 offen{ntx}"); vm.add("pf")
    if not opts['rf']: do_pf()
    c("K dma patterns")
    S_KV = 77
    e("v_lshrrev_b32 v1, 5, v0"); e("v_and_b32 v2, 31, v0"); e("v_xor_b32 v3, v2, v1"); e("v_lshlrev_b32 v3, 4, v3")
    e("v_lshl_add_u32 v3, v1, 9, v3")
    for n in range(8): e(f"v_xor_b32 v{VK+n}, {(2*n)<<4}, v3")
    e(f"s_lshl_b32 s{S_KV}, s{S_LW}, 14")
    KD = 128
    def k_load(n):
        if DEEP:
            e(f"s_add_u32 s{S_SOFF}, s{S_KV}, {n*1024}")
            e(f"buffer_load_dwordx4 {vr(KD+4*n,4)}, v{VK+n%8}, {srd(SK)}, s{S_SOFF} offen{ntk}"); vm.add(("k", n)); return
        e(f"s_add_u32 s{S_SOFF}, s{S_KV}, {n*1024}"); e(f"s_add_u32 m0, s{S_SOFF}, {KR}"); e("s_nop 0")
        e(f"buffer_load_dwordx4 v{VK+n%8}, {srd(SK)}, s{S_SOFF} offen{ntk} lds"); vm.add("k")
    def v_load(n):
        e(f"s_add_u32 s{S_SOFF}, s{S_KV}, {(n&~3)*1024}")
        e(f"buffer_load_dwordx4 {vr(VD+4*n,4)}, v{VL}, {srd(SV)}, s{S_SOFF} offen offset:{(n&3)*1024}{ntk}"); vm.add(("v", n))
    def wo_pf():
        e(f"s_mul_i32 s68, s{S_B}, 28672"); e(f"s_mul_i32 s69, s{S_LW}, 7168"); e("s_add_u32 s68, s68, s69")
        e(f"v_lshlrev_b32 v1, 7, v0")
        fl = ["", " nt", " sc0 nt", " nt sc1", " sc0 nt sc1", " sc0", " sc1"][opts["wo_fl"]]
        if opts["wo_full"]:
            for i in range(7):
                e(f"buffer_load_dwordx4 {vr(DUM,4)}, v{VL}, {srd(SWO)}, s68 offen{fl}"); vm.add("pf"); e("s_add_u32 s68, s68, 1024")
        else:
            e(f"buffer_load_dword v{DUM}, v1, {srd(SWO)}, s68 offen{fl}"); vm.add("pf")
    miss = [(k_load, n) for n in range(16)] + [(v_load, n) for n in range(16)]
    if opts["pf"]: miss.insert(int(opts["wo_pos"]), (lambda n: wo_pf(), 0))
    def do_miss(cnt):
        for _ in range(cnt):
            if miss: f, n = miss.pop(0); f(n)
    e(f"v_lshlrev_b32 v{VL}, 4, v0")
    if not opts['rf']: do_miss(opts["m_pre"])
    for r in range(4):
        e(f"v_xor_b32 v1, {r<<2}, v0"); e(f"v_lshlrev_b32 v1, 4, v1"); e(f"v_add_u32 v{VQ+r}, {r*7168}, v1")
    e("v_lshrrev_b32 v2, 3, v0"); e("v_mul_u32_u24 v2, 896, v2"); e("v_and_b32 v3, 7, v0"); e("v_lshrrev_b32 v4, 4, v0")
    for n in range(2):
        e(f"v_add_u32 v5, {4*(n&1)}, v4"); e("v_xor_b32 v5, v5, v3"); e("v_lshl_add_u32 v5, v5, 4, v2")
        e(f"v_add_u32 v{VX+n}, {n*6144}, v5")
    S_QB, S_XB, S_LQ, S_LX, S_OB, S_LO = 4, 5, 30, 31, 62, 63
    e(f"s_lshl_b32 s{S_QB}, s{S_LW}, 15")
    e(f"s_lshl_b32 s{S_LQ}, s{S_LW}, 12")
    e(f"s_mul_i32 s{S_XB}, s{S_LW}, 14336")
    e(f"s_lshl_b32 s{S_LX}, s{S_LW}, 11"); e(f"s_add_u32 s{S_LX}, s{S_LX}, {XR}")
    def q_stage(t):
        e(f"s_add_u32 m0, s{S_LQ}, {(t%NSQ)*16384}")
        e(f"s_add_u32 s{S_SOFF}, s{S_QB}, {16*t*8192}")
        for r in range(4):
            off = f" offset:{r*1024}" if r else ""
            e(f"buffer_load_dwordx4 v{VQ+r}, {srd(SWQ)}, s{S_SOFF} offen{off}{ntr} lds"); vm.add(("q", t))
    def x_chunk(X):
        e(f"s_add_u32 m0, s{S_LX}, {(X%NXS)*8192}")
        e(f"s_add_u32 s{S_SOFF}, s{S_XB}, {X*128}")
        for n in range(2):
            off = f" offset:{n*1024}" if n else ""
            e(f"buffer_load_dwordx4 v{VX+n}, {srd(SX)}, s{S_SOFF} offen{off}{ntx} lds"); vm.add(("x", X))
    OSL = [98304, 114688, 131072, 147456, 0, 16384]
    def o_stage(t):
        e(f"s_add_u32 m0, s{S_LQ}, {OSL[t%6]}")
        if opts["rot"]:
            if t % 4 == 0 and t:
                e("s_add_u32 s6, s6, 128"); e("s_cmp_eq_u32 s6, 896"); e("s_cselect_b32 s6, 0, s6"); e(f"s_add_u32 s7, s6, s{S_OB}")
            e(f"s_add_u32 s{S_SOFF}, s7, {128*(t%4)*896}")
        else: e(f"s_add_u32 s{S_SOFF}, s{S_OB}, {128*(t%4)*896 + (t//4)*128}")
        nto = " nt" if opts["nt_ringo"] else ""
        for n in range(4):
            off = f" offset:{n*1024}" if n else ""
            if not (opts["onoload"] and t > 5): e(f"buffer_load_dwordx4 v{VO+n}, {srd(SWO)}, s{S_SOFF} offen{off}{nto} lds"); vm.add(("o", t))
    RST = [opts["r0"] + opts["rstep"]*i for i in range(opts["nreg"])]
    WR = 128
    rq = list(range(opts["nreg"]))
    def r_load(cnt):
        for _ in range(cnt):
            if not rq: return
            i = rq.pop(0); t = RST[i]
            e(f"s_add_u32 s{S_SOFF}, s{S_OB}, {128*(t%4)*896 + (t//4)*128}")
            for n in range(4):
                off = f" offset:{n*1024}" if n else ""
                e(f"buffer_load_dwordx4 {vr(WR+16*i+4*n,4)}, v{VO+n}, {srd(SWO)}, s{S_SOFF} offen{off}"); vm.add(("r", t))
    def o_fill(t):
        if t not in RST: return o_stage(t)
        i = RST.index(t)
        vm.wait([("r", t)])
        e(f"s_add_u32 s68, s{S_LQ}, {OSL[t%6]}"); e(f"v_add_u32 v5, s68, v{VL}")
        for n in range(4): e(f"ds_write_b128 v5, {vr(WR+16*i+4*n,4)} offset:{n*1024}")
    x_chunk(0)
    if opts['rf'] == 2:
        q_stage(0); q_stage(1); do_pf(); q_stage(2); q_stage(3); x_chunk(1); q_stage(4); do_miss(opts["m_pre"])
    else:
        for t in range(4): q_stage(t)
        x_chunk(1)
        if not (DEEP and opts["init4"]): q_stage(4)
        if DEEP and not opts["init4"]:
            if opts['rf'] == 3: do_pf()
            q_stage(5); q_stage(6); q_stage(7); x_chunk(2); x_chunk(3)
        if opts['rf'] == 1: do_pf()
        if opts['rf']: do_miss(opts["m_pre"])
    do_miss(opts["m_post"])
    c("remaining address setup (off the critical path)")
    e("v_lshrrev_b32 v1, 3, v0"); e("v_mul_u32_u24 v1, 896, v1"); e("v_and_b32 v2, 7, v0"); e("v_bfe_u32 v3, v0, 4, 1")
    e("v_lshlrev_b32 v3, 2, v3"); e("v_xor_b32 v2, v2, v3"); e("v_lshl_add_u32 v1, v2, 4, v1")
    for n in range(4): e(f"v_add_u32 v{VO+n}, {n*6144}, v1")
    e(f"s_mul_i32 s{S_OB}, s{S_LW}, 28672")
    if opts["rot"]:
        e(f"s_mul_i32 s6, s{S_B}, 37"); e("s_lshr_b32 s6, s6, 8"); e("s_mul_i32 s6, s6, 7"); e(f"s_sub_u32 s6, s{S_B}, s6")
        e("s_lshl_b32 s6, s6, 7"); e(f"s_add_u32 s7, s6, s{S_OB}")
    e("v_lshrrev_b32 v1, 5, v0"); e("v_and_b32 v2, 31, v0")
    for par in range(2):
        e(f"v_or_b32 v4, {2*par}, v1"); e("v_lshlrev_b32 v4, 2, v4"); e("v_xor_b32 v4, v4, v2"); e("v_lshlrev_b32 v4, 4, v4")
        e("v_lshl_add_u32 v4, v1, 9, v4"); e(f"v_add_u32 v{VW+par}, s{S_KV}, v4")
    def qphase(grp):
        acc = 0.0
        BQ = opts["bq"]
        for t in range(0, 29, BQ):
            if t < 28: vm.wait([("q", t), ("q", t+BQ-1), ("x", t//4)])
            elif DEEP: e("s_waitcnt lgkmcnt(0)")
            else:
                while miss and miss[0][0] is k_load: do_miss(1)
                vm.wait(["k"])
            e(f"s_barrier ; B{t}")
            if t == 0 and DEEP and opts["init4"]:
                if grp is not None and opts[f"k{grp}"] < 0: do_miss(16)
                if grp is not None and opts[f"v{grp}"] < 0: do_miss(99)
                q_stage(4); q_stage(5); q_stage(6); q_stage(7); x_chunk(2); x_chunk(3)
            for u in range(t + NSQ - BQ, t + NSQ):
                if t >= 1 and u < 28: q_stage(u)
            if t >= 4 and t % 4 == 0 and t//4 + NXS - 1 <= 6: x_chunk(t//4 + NXS - 1)
            if DEEP and t == opts["kw_at"]:
                while miss and miss[0][0] is k_load: do_miss(1)
                e(f"s_add_u32 s68, s{S_KV}, {KR}"); e(f"v_add_u32 v1, s68, v{VL}")
                for n in range(16):
                    if n % 4 == 0: vm.wait([("k", n+3)])
                    e(f"ds_write_b128 v1, {vr(KD+4*n,4)} offset:{n*1024}")
            if grp is None:
                acc += BQ * opts["m_rate"] / 100.0
                n = int(acc); acc -= n; do_miss(n)
                if 28 - opts["rpre"] <= t < 28 and not miss: r_load(1)
            else:
                if t == opts[f"k{grp}"]: do_miss(16)
                if t == opts[f"v{grp}"]: do_miss(99)
        do_miss(99)
        r_load(99)
        for n in range(16):
            if n % 4 == 0: vm.wait([("v", n+3)])
            e(f"ds_write_b128 v{VW+(n&1)}, {vr(VD+4*n,4)} offset:{n*1024}")
    if opts["stag"]:
        c("K/V miss bursts are staggered over batch groups (b&3): each CU streams L2 hits at full rate outside its burst")
        e(f"s_and_b32 s68, s{S_B}, 3")
        for g in range(1, 4): e(f"s_cmp_eq_u32 s68, {g}"); e(f"s_cbranch_scc1 L_qg{g}")
        ops0 = list(vm.ops); miss0 = list(miss)
        for g in range(4):
            lab(f"L_qg{g}")
            vm.ops = list(ops0); miss[:] = miss0
            qphase(g)
            vm.wait(["pf"]); assert not vm.ops, vm.ops
            if g < 3: e("s_branch L_qgdone")
        lab("L_qgdone")
    else: qphase(None)
    e("s_waitcnt lgkmcnt(0)")
    e("s_barrier ; B29")
    for t in range(0, 4): o_stage(t)
    BO = opts["bo"]
    for t in range(0, 29, BO):
        if t < 28: vm.wait([("o", t), ("o", t+BO-1)])
        if t in RST or t+BO-1 in RST: e("s_waitcnt lgkmcnt(0)")
        e(f"s_barrier ; B'{t}")
        if t == 0: o_stage(4); o_stage(5)
        for u in range(t + 6 - BO, t + 6):
            if t >= 1 and u < 28: o_fill(u)
        if t == 16 and opts["er"]:
            c("wave 7: all hand-off lines of the group were reset (normally true long ago)")
            e(f"s_cmp_lg_u32 s{S_WAVE}, 7"); e("s_cbranch_scc1 L_rpolled")
            e(f"s_mov_b32 s{S_CNT}, 0x40000")
            lab("L_rpoll")
            e("v_readfirstlane_b32 s68, v3")
            e("s_cmp_ge_u32 s68, 8"); e("s_cbranch_scc1 L_rpolled")
            e("s_sleep 8")
            e(f"buffer_load_dword v3, v1, {srd(SDBG)}, 0 offen sc1"); e("s_waitcnt vmcnt(0)")
            e(f"s_sub_u32 s{S_CNT}, s{S_CNT}, 1"); e(f"s_cmp_lg_u32 s{S_CNT}, 0"); e("s_cbranch_scc1 L_rpoll")
            lab("L_rpolled")
        if t == (9 if opts["er"] else 22) and opts["flg"]:
            e(f"s_cmp_eq_u32 s{S_WAVE}, 7"); e("v_mov_b32 v1, 0"); e("v_mov_b32 v3, 0"); e("s_cselect_b64 exec, 1, 0")
            e(f"buffer_load_dword v3, v1, {srd(SDBG)}, 0 offen sc1"); vm.add("chk")
            e("s_mov_b64 exec, -1")
    if opts["er"]:
        if opts["er"] == 1: e(f"s_mov_b32 s12, s{S_LW}"); e("s_mov_b32 s13, 0")
        else:
            e(f"s_cmp_eq_u32 s{S_WAVE}, 7"); e("s_cbranch_scc1 L_end")
            e(f"s_mov_b32 s12, s{S_WAVE}"); e("s_movk_i32 s13, 128")
        e("s_branch L_tail2")
        return
    if opts["flg"]:
        c("wave 7: all hand-off lines of the group were reset (normally true long ago)")
        e(f"s_cmp_lg_u32 s{S_WAVE}, 7"); e("s_cbranch_scc1 L_tail")
        e(f"s_mov_b32 s{S_CNT}, 0x40000")
        e("s_branch L_rchk")
        lab("L_rpoll")
        e(f"buffer_load_dword v3, v1, {srd(SDBG)}, 0 offen sc1")
        lab("L_rchk")
        e("s_waitcnt vmcnt(0)")
        e("v_readfirstlane_b32 s68, v3")
        e("s_cmp_ge_u32 s68, 8"); e("s_cbranch_scc1 L_rpolled")
        e("s_sleep 8")
        e(f"s_sub_u32 s{S_CNT}, s{S_CNT}, 1"); e(f"s_cmp_lg_u32 s{S_CNT}, 0"); e("s_cbranch_scc1 L_rpoll")
        lab("L_rpolled")
        fs = opts["fstride"]
        e(f"s_lshl_b32 s68, s{S_HP}, {fs}"); e(f"v_lshlrev_b32 v1, {opts['pl']}, v0"); e("v_add_u32 v1, s68, v1")
        e(f"s_lshl_b32 s68, s{S_HP}, {opts['pl']}"); e(f"v_lshlrev_b32 v4, {fs}, v0"); e("v_add_u32 v4, s68, v4")
        e("v_mov_b32 v2, 1")
    e("s_branch L_tail" if opts["fused"] else "s_endpgm")

def reduce_setup():
    e("s_mul_i32 s68, s64, 458752"); make_srd(SWS, 28, 68, 458752)
    e("s_mov_b32 s68, 0"); make_srd(SOUT, 24, 68, 1835008)
    e("v_lshlrev_b32 v1, 4, v0")
    e("s_and_b32 s69, s66, 1"); e("s_lshr_b32 s70, s66, 1")
    e("s_cmp_ge_u32 s70, 14"); e("s_cselect_b32 s71, 1, 0"); e("s_mul_i32 s72, s71, 14"); e("s_sub_u32 s70, s70, s72")
    e("s_and_b32 s72, s64, 15"); e("s_lshr_b32 s73, s64, 4")
    e("s_lshl_b32 s72, s72, 1"); e("s_add_u32 s72, s72, s71"); e("s_mul_i32 s72, s72, 57344")
    e("s_mul_i32 s73, s73, 896"); e("s_add_u32 s72, s72, s73"); e("s_lshl_b32 s70, s70, 6"); e("s_add_u32 s72, s72, s70")
    e("s_lshl_b32 s69, s69, 4"); e("s_add_u32 s72, s72, s69")
    e("v_and_b32 v2, 31, v0"); e("v_mul_u32_u24 v2, 1792, v2"); e("v_lshrrev_b32 v3, 5, v0"); e("v_lshl_add_u32 v2, v3, 5, v2")
    e("s_lshl_b32 s68, s66, 10")

def reduce_body(fl):
    for j in range(8):
        e(f"buffer_load_dwordx4 {vr(8+4*j,4)}, v1, {srd(SWS)}, s68 offen{fl}")
        if j < 7: e("s_add_u32 s68, s68, 57344")
    for j in range(8):
        e(f"s_waitcnt vmcnt({7-j})")
        for i in range(4):
            if j == 0:
                e(f"v_lshlrev_b32 v{40+2*i}, 16, v{8+i}"); e(f"v_and_b32 v{41+2*i}, 0xffff0000, v{8+i}")
            else:
                e(f"v_lshlrev_b32 v4, 16, v{8+4*j+i}"); e(f"v_and_b32 v5, 0xffff0000, v{8+4*j+i}")
                e(f"v_add_f32 v{40+2*i}, v{40+2*i}, v4"); e(f"v_add_f32 v{41+2*i}, v{41+2*i}, v5")
    for i in range(4): e(f"v_cvt_pk_bf16_f32 v{48+i}, v{40+2*i}, v{41+2*i}")
    e(f"buffer_store_dwordx4 v[48:51], v2, {srd(SOUT)}, s72 offen")

def reduce_kernel():
    lab("reduce_kernel")
    e("s_cmp_ge_u32 s2, 256"); e("s_cbranch_scc1 R_end")
    e("s_load_dwordx2 s[24:25], s[0:1], 80")
    e("s_load_dwordx2 s[28:29], s[0:1], 96")
    e("v_lshrrev_b32 v1, 6, v0"); e("v_and_b32 v0, 63, v0"); e("s_nop 0"); e("v_readfirstlane_b32 s3, v1")
    e("s_lshr_b32 s64, s2, 3"); e("s_and_b32 s65, s2, 7")
    e("s_mul_i32 s66, s65, 7"); e("s_add_u32 s66, s66, s3")
    e("s_waitcnt lgkmcnt(0)")
    reduce_setup()
    reduce_body("")
    lab("R_end")
    e("s_endpgm")

def kd(name, vg, sg=102):
    return f""".amdhsa_kernel {name}
  .amdhsa_next_free_vgpr {vg}
  .amdhsa_next_free_sgpr {sg}
  .amdhsa_accum_offset {(vg+3)//4*4}
  .amdhsa_group_segment_fixed_size 0
  .amdhsa_kernarg_size 104
  .amdhsa_user_sgpr_count 2
  .amdhsa_user_sgpr_kernarg_segment_ptr 1
  .amdhsa_system_sgpr_workgroup_id_x 1
.end_amdhsa_kernel"""

MK = NAME + "_kernel" if opts["fused"] else "main_kernel"
hdr = "; Fused 2-branch cached-MHA block (Q-proj, attention, out-proj) for gfx950 -- generated by gen/gen.py\n"
if opts["fused"]: hdr += "; @launch grid=(256,1,1) block=(512,1,1) lds=163840\n"
else: hdr += "; @launch kernel=main_kernel grid=(256,1,1) block=(512,1,1) lds=163840\n; @launch kernel=reduce_kernel grid=(256,1,1) block=(448,1,1) lds=0\n"
hdr += '.amdgcn_target "amdgcn-amd-amdhsa--gfx950"\n.text'
out = [hdr, f".globl {MK}", ".p2align 8", f".type {MK},@function"]
main_kernel(); out += L; L.clear()
if not opts["fused"]:
    out += [".globl reduce_kernel", ".p2align 8", ".type reduce_kernel,@function"]
    reduce_kernel(); out += L; L.clear()
out += ['.section .rodata,"a"', ".p2align 6", kd(MK, 256)]
if not opts["fused"]: out += [".p2align 6", kd("reduce_kernel", 56)]
open(sys.argv[1], "w").write("\n".join(out) + "\n")
```

```python
import sys
NAME = "concat_heads__mha_block_cached__mha_block_cached__near_ridge"
opts = dict(ws1=1, ws2=7, wt2=-1, wt3=8, pq1=-1, pq2=4, pq3=12, pfq=1, mb=4, mfirst=2, qg1=0, qun=1, pl=2, rowmap=1, er=0, bq=1, bo=1, nreg=0, r0=7, rstep=2, rpre=4, wil=0, pvx=-1, qs=9, dry=0, rot=0, init4=1, stag=0, k0=0, k1=7, k2=13, k3=19, v0=0, v1=7, v2=13, v3=19, deep=0, kw_at=24, rf=1, flg=1, tlbw=1, fstride=8, st_fl=0, sleep=1, fused=1, stamps=0, nt_kv=1, delay_kv=0, pf=1, pf_at=12, noread=0, nomfma=0, noprio=0, nokv=0, nt_pf=0, nt_ring=0, nt_x=0, m_pre=0, m_post=0, m_rate=100, wo_pos=24, wo_fl=0, wo_full=0, onoread=0, onomfma=0, onoload=0, nt_ringo=0)
for a in sys.argv[2:]:
    k, v = a.split("="); opts[k] = int(v)
L = []
def e(s): L.append("    " + s)
def lab(s): L.append(s + ":")
def c(s): L.append("    ; " + s)
def vr(a, n): return f"v[{a}:{a+n-1}]"

DEEP = opts['deep']
RING_Q = 0; NSQ = 8 if DEEP else 5; XR = 131072 if DEEP else 81920; KR = 65536 if DEEP else 98304; NXS = 4 if DEEP else 2; VR = 0; RING_O = 65536; NSO = 6; EX = 0
S_WAVE = 3
SX, SK, SV, SWQ, SWO, SWS, SDBG, SOUT = 32, 36, 40, 44, 48, 52, 56, 60
S_BR, S_B, S_HP, S_PAIR = 64, 65, 66, 67
S_T0, S_T1, S_T2, S_T3 = 68, 69, 70, 71
S_SLOT, S_CNT, S_SOFF, S_C = 72, 73, 74, 75
SB = 78
SFLG = 16
def srd(n): return f"s[{n}:{n+3}]"

class VM:
    def __init__(s): s.ops = []
    def add(s, tag):
        s.ops.append(tag)
        if len(s.ops) > 60: e("s_waitcnt vmcnt(59)"); s.ops = s.ops[-59:]
    def wait(s, tags):
        idx = max([i for i, t in enumerate(s.ops) if t in tags], default=-1)
        n = len(s.ops) - 1 - idx
        assert n <= 63
        if idx >= 0:
            e(f"s_waitcnt vmcnt({n})")
            s.ops = s.ops[idx+1:]

def stamp(i):
    if opts["stamps"]:
        e(f"s_memtime s[{78+2*i}:{79+2*i}]" if i else "s_memtime s[78:79]") if False else e(f"s_memtime s[{SB+2*i}:{SB+1+2*i}]")

def make_srd(n, plo, add_lo, nrec):
    e(f"s_add_u32 s{n}, s{plo}, s{add_lo}")
    e(f"s_addc_u32 s{n+1}, s{plo+1}, 0")
    e(f"s_and_b32 s{n+1}, s{n+1}, 0xffff")
    if isinstance(nrec, int): e(f"s_mov_b32 s{n+2}, {nrec}")
    else: e(f"s_mov_b32 s{n+2}, {nrec}")
    e(f"s_mov_b32 s{n+3}, 0x20000")

def decode_wg():
    e("s_and_b32 s68, s2, 7")
    e("s_lshr_b32 s69, s2, 3")
    e(f"s_lshr_b32 s{S_BR}, s68, 2")
    e(f"s_and_b32 s{S_PAIR}, s69, 1")
    e(f"s_lshr_b32 s{S_B}, s69, 1")
    e("s_and_b32 s68, s68, 3")
    e("s_lshl_b32 s68, s68, 1")
    e(f"s_add_u32 s{S_HP}, s68, s{S_PAIR}")

def main_kernel():
    lab(MK)
    e("s_cmp_ge_u32 s2, 256")
    e("s_cbranch_scc1 L_end")
    e("s_load_dwordx16 s[4:19], s[0:1], 0")
    e("s_load_dwordx8 s[20:27], s[0:1], 64")
    e("s_load_dwordx2 s[28:29], s[0:1], 96")
    stamp(0)
    e("v_lshrrev_b32 v1, 6, v0")
    e("v_and_b32 v0, 63, v0")
    e("s_nop 0")
    e(f"v_readfirstlane_b32 s{S_WAVE}, v1")
    decode_wg()
    e("s_waitcnt lgkmcnt(0)")
    e(f"s_cmp_eq_u32 s{S_BR}, 0")
    e("s_cselect_b64 s[4:5], s[4:5], s[14:15]")
    e("s_cselect_b64 s[6:7], s[6:7], s[16:17]")
    e("s_cselect_b64 s[8:9], s[8:9], s[18:19]")
    e("s_cselect_b64 s[10:11], s[10:11], s[20:21]")
    e("s_cselect_b64 s[12:13], s[12:13], s[22:23]")
    if opts["stamps"]: e("s_memrealtime s[14:15]")
    e(f"s_mul_i32 s68, s{S_B}, 57344"); make_srd(SX, 4, 68, 57344)
    e(f"s_lshl_b32 s68, s{S_B}, 19"); e(f"s_lshl_b32 s69, s{S_HP}, 16"); e("s_add_u32 s68, s68, s69")
    make_srd(SK, 6, 68, 65536); make_srd(SV, 8, 68, 65536)
    e(f"s_lshl_b32 s68, s{S_HP}, 10"); e("s_sub_u32 s69, 3670016, s68"); make_srd(SWQ, 10, 68, "s69")
    e(f"s_mul_i32 s68, s{S_HP}, 458752"); make_srd(SWO, 12, 68, 458752)
    e(f"s_lshl_b32 s68, s{S_BR}, 4"); e(f"s_add_u32 s68, s68, s{S_B}"); e("s_lshl_b32 s68, s68, 3")
    e(f"s_add_u32 s68, s68, s{S_HP}"); e("s_mul_i32 s68, s68, 57344"); make_srd(SWS, 28, 68, 57344)
    if opts["flg"]:
        fs = opts["fstride"]
        e(f"s_lshl_b32 s68, s{S_BR}, 4"); e(f"s_add_u32 s68, s68, s{S_B}"); e("s_lshl_b32 s68, s68, 3")
        make_srd(SDBG, 26, 68, 4)
        e(f"s_lshl_b32 s68, s68, {fs}"); e("s_add_u32 s68, s68, 0x4000000"); make_srd(SFLG, 28, 68, 8 << fs)
    e(f"s_cmp_lt_u32 s{S_WAVE}, 4"); e("s_cbranch_scc1 L_compute")
    loader()
    lab("L_compute")
    compute()
    lab("L_end")
    e("s_endpgm")

MF = "v_mfma_f32_32x32x16_bf16"
def compute():
    c("================= compute waves 0..3 =================")
    ACC = 0; AF = 128; XF = 192; AQB = 200; AQC = 204; AX = 208; AXT = 209; DUM = 210
    AK = 240; AV = 241; AO = 245; AOC = 246; AEW = 247; AER = 248; AST = 249; T0 = 250; T1 = 251; T2 = 252; T3 = 253; T4 = 254
    if not opts["noprio"]: e("s_setprio 1")
    S_HH, S_QH = 76, 77
    e(f"s_lshr_b32 s{S_HH}, s{S_WAVE}, 1"); e(f"s_and_b32 s{S_QH}, s{S_WAVE}, 1")
    c("lane decomposition: G=l>>4 r=(l>>2)&3 cc=l&3")
    e(f"v_bfe_u32 v1, v0, 2, 2")
    e(f"v_lshrrev_b32 v2, 5, v0")
    e(f"v_bfe_u32 v3, v0, 4, 1")
    e(f"v_and_b32 v4, 1, v0")
    e(f"v_bfe_u32 v5, v0, 1, 1")
    e(f"v_and_b32 v6, 31, v0")
    e("v_lshlrev_b32 v7, 13, v2"); e("v_lshl_add_u32 v7, v1, 10, v7")
    e("v_lshl_add_u32 v7, v3, 5, v7"); e("v_lshl_add_u32 v7, v4, 4, v7"); e("v_lshl_add_u32 v7, v5, 3, v7")
    e(f"s_lshl_b32 s68, s{S_HH}, 9"); e("v_add_u32 v7, s68, v7")
    for d in range(4):
        e(f"v_xor_b32 v8, {d}, v1"); e(f"v_lshl_add_u32 v{AQB+d}, v8, 6, v7")
    e("v_bfe_u32 v8, v0, 1, 3"); e("v_xor_b32 v8, v8, v2"); e("v_lshlrev_b32 v8, 4, v8"); e("v_lshl_add_u32 v8, v6, 7, v8")
    e(f"s_lshl_b32 s68, s{S_QH}, 12"); e(f"s_add_u32 s68, s68, {XR}"); e(f"v_add_u32 v{AX}, s68, v8")
    e("v_and_b32 v8, 15, v0"); e("v_xor_b32 v8, v8, v2"); e("v_lshlrev_b32 v8, 4, v8"); e("v_lshl_add_u32 v8, v6, 9, v8")
    e(f"s_lshl_b32 s69, s{S_HH}, 15"); e(f"s_add_u32 s68, s69, {KR}"); e(f"v_add_u32 v{AK}, s68, v8")
    e("v_lshlrev_b32 v7, 11, v2"); e("v_lshl_add_u32 v7, v1, 9, v7"); e("v_lshl_add_u32 v7, v3, 5, v7")
    e("v_and_b32 v8, 3, v0"); e("v_lshl_add_u32 v7, v8, 3, v7"); e("v_add_u32 v7, s69, v7")
    for d in range(4):
        e(f"v_xor_b32 v8, {d}, v1"); e(f"v_lshl_add_u32 v{AV+d}, v8, 6, v7")
    e("v_lshl_add_u32 v7, v2, 2, v1"); e("v_lshlrev_b32 v7, 7, v7")
    e("v_lshl_add_u32 v7, v4, 5, v7"); e("v_lshl_add_u32 v7, v3, 4, v7"); e("v_lshl_add_u32 v7, v5, 3, v7")
    e("v_lshrrev_b32 v8, 1, v1"); e(f"v_xor_b32 v8, s{S_HH}, v8"); e(f"v_lshl_add_u32 v{AO}, v8, 6, v7")
    e("v_lshlrev_b32 v7, 4, v0")
    e(f"s_lshl_b32 s68, s{S_QH}, 14"); e(f"s_lshl_b32 s69, s{S_HH}, 15")
    e(f"s_sub_u32 s70, 65536, s69"); e("s_add_u32 s70, s70, s68"); e(f"v_add_u32 v{AEW}, s70, v7")
    e(f"s_add_u32 s70, 32768, s69"); e("s_add_u32 s70, s70, s68"); e(f"v_add_u32 v{AER}, s70, v7")
    e(f"s_mul_i32 s68, s{S_QH}, 14"); e(f"s_add_u32 s68, s68, s{S_HH}"); e("s_lshl_b32 s68, s68, 11")
    e(f"v_add_u32 v{AST}, s68, v7")
    e(f"s_cmp_eq_u32 s{S_HH}, 0"); e("s_cselect_b64 s[8:9], -1, 0")
    if opts["flg"]:
        c("wave 0: reset this workgroup's hand-off line in ws")
        e(f"s_cmp_lg_u32 s{S_WAVE}, 0"); e("s_cbranch_scc1 L_noreset")
        e(f"s_lshl_b32 s68, s{S_HP}, {opts['fstride']}")
        e(f"v_lshlrev_b32 v8, {2 if opts['er'] else opts['pl']}, v0"); e("v_mov_b32 v9, 0")
        if not opts["er"]: e("s_mov_b64 exec, 0xff")
        e(f"buffer_store_dword v9, v8, {srd(SFLG)}, s68 offen sc1")
        e("s_mov_b64 exec, -1")
        lab("L_noreset")
    if opts["tlbw"]:
        c("wave 1: touch the partial slab / output pages (address translation warm-up; values unused)")
        e(f"s_cmp_lg_u32 s{S_WAVE}, 1"); e("s_cbranch_scc1 L_notlb")
        e(f"s_mul_i32 s68, s{S_B}, 114688"); make_srd(SOUT, 24, 68, 57344)
        e("v_mov_b32 v9, 0")
        e(f"buffer_load_dword v{T3}, v9, {srd(SWS)}, 0 offen sc1")
        e(f"buffer_load_dword v{T4}, v9, {srd(SOUT)}, 0 offen sc1")
        lab("L_notlb")
    e("s_mov_b32 s11, 0")
    if opts["dry"]:
        c("instruction-cache warm-up: run the attention section once with all lanes off")
        e("s_mov_b32 s11, 1"); e("s_mov_b64 exec, 0"); e("s_branch L_S")
        lab("L_dryret")
        e("s_mov_b32 s11, 0"); e("s_mov_b64 exec, -1")
    c("zero Q accumulators")
    if not opts["qun"]:
        for i in range(128): e(f"v_mov_b32 v{i}, 0")
    def q_reads(buf, piece):
        r = [f"ds_read_b128 {vr(XF+4*buf,4)}, v{AXT}"]
        for dt in range(8):
            for u in range(2):
                r.append(f"ds_read_b64_tr_b16 {vr(AF+32*buf+4*dt+2*u,2)}, v{AQC+(dt&3)} offset:{u*4096+(dt>>2)*256}")
        return r
    if opts["qun"]:
        AXP = 212
        for d in range(4): e(f"v_add_u32 v{AQC+d}, 0x10000, v{AQB+d}")
        for p in range(4): e(f"v_xor_b32 v{AXP+p}, {p<<5}, v{AX}")
        def q_rd(t):
            buf = t & 1; sl = (t % NSQ) * 16384
            r = [f"ds_read_b128 {vr(XF+4*buf,4)}, v{AXP+(t&3)} offset:{((t//4) % NXS)*8192}"]
            for dt in range(8):
                for u in range(2):
                    r.append(f"ds_read_b64_tr_b16 {vr(AF+32*buf+4*dt+2*u,2)}, v{(AQC if sl >= 65536 else AQB)+(dt&3)} offset:{(sl & 65535)+u*4096+(dt>>2)*256}")
            return r
        stamp(1)
        e("s_barrier ; B0")
        stamp(2)
        for r in q_rd(0): e(r)
        for t in range(28):
            cur = t & 1
            m = [f"{MF} {vr(16*dt,16)}, {vr(AF+32*cur+4*dt,4)}, {vr(XF+4*cur,4)}, {vr(16*dt,16) if t else 0}" for dt in range(8)]
            rd = q_rd(t+1) if t < 27 else []
            e("s_waitcnt lgkmcnt(14)")
            e(m[0])
            e("s_waitcnt lgkmcnt(0)")
            if opts["bq"] == 1 or t & 1: e(f"s_barrier ; B{t+1}")
            for j in range(1, 8):
                for _ in range(opts["qg1"] if j == 1 else 3):
                    if rd: e(rd.pop(0))
                e(m[j])
            assert not rd
    else:
        e(f"s_mov_b32 s{S_SLOT}, 0")
        for d in range(4): e(f"v_mov_b32 v{AQC+d}, v{AQB+d}")
        e(f"v_mov_b32 v{AXT}, v{AX}")
        stamp(1)
        e("s_barrier ; B0")
        stamp(2)
        for r in q_reads(0, 0): e(r)
        def q_upd(p):
            e(f"s_add_u32 s{S_SLOT}, s{S_SLOT}, 16384"); e(f"s_cmp_eq_u32 s{S_SLOT}, {NSQ*16384}"); e(f"s_cselect_b32 s{S_SLOT}, 0, s{S_SLOT}")
            if p % 4 == 3:
                if DEEP: e(f"v_add_u32 v{AX}, 0x2000, v{AX}"); e(f"v_and_b32 v{AX}, 0x27fff, v{AX}")
                else: e(f"v_xor_b32 v{AX}, 0x2000, v{AX}")
            e(f"v_xor_b32 v{AXT}, {((p+1)&3)<<5}, v{AX}")
            for d in range(4): e(f"v_add_u32 v{AQC+d}, s{S_SLOT}, v{AQB+d}")
        q_upd(0)
        e(f"s_mov_b32 s{S_CNT}, 7")
        lab("L_qloop")
        for p in range(4):
            cur = p & 1; nxt = cur ^ 1
            m = [f"{MF} {vr(16*dt,16)}, {vr(AF+32*cur+4*dt,4)}, {vr(XF+4*cur,4)}, {vr(16*dt,16)}" for dt in range(8)]
            rd = q_reads(nxt, (p+1) & 3)
            e("s_waitcnt lgkmcnt(14)")
            e(m[0])
            e("s_waitcnt lgkmcnt(0)")
            if opts["bq"] == 1 or p & 1: e("s_barrier")
            k = 0
            if opts["noread"]: rd = []
            for j in range(1, 8):
                for _ in range(3 if j > 1 else 1):
                    if k < len(rd): e(rd[k]); k += 1
                if j == 7: q_upd(p + 1)
                if not opts["nomfma"]: e(m[j])
            assert k == len(rd)
        e(f"s_sub_u32 s{S_CNT}, s{S_CNT}, 1"); e(f"s_cmp_lg_u32 s{S_CNT}, 0"); e("s_cbranch_scc1 L_qloop")
    stamp(3)
    if opts["flg"] or opts["tlbw"]: e("s_waitcnt vmcnt(0)")
    if opts["flg"]:
        e(f"s_cmp_lg_u32 s{S_WAVE}, 0"); e("s_cbranch_scc1 L_nocnt")
        e(f"v_mov_b32 v{T3}, 0"); e(f"v_mov_b32 v{T4}, 1")
        e("s_mov_b64 exec, 1")
        e(f"buffer_atomic_add v{T4}, v{T3}, {srd(SDBG)}, 0 offen sc1")
        e("s_mov_b64 exec, -1")
        lab("L_nocnt")
    lab("L_S")
    c("---- S^T = K Q^T")
    QP = 128; KF = 192; SA = 208
    e("s_waitcnt lgkmcnt(0)")
    def kslot(n): return (KF + 4*(n&7)) if (n&7) < 4 else 4*((n&7)-4)
    def k_read(n):
        x = n >> 1; kt = n & 1
        return f"ds_read_b128 {vr(kslot(n),4)}, v{T0+(x&1)} offset:{kt*16384+(x>>3)*256}"
    def k_addr(x): return f"v_xor_b32 v{T0+(x&1)}, {(x&7)<<5}, v{AK}"
    def cvt_tile(src, dst):
        return [f"v_cvt_pk_bf16_f32 v{dst+i}, v{src+2*i}, v{src+2*i+1}" for i in range(8)]
    for n in range(4):
        if n % 2 == 0: e(k_addr(n >> 1))
        e(k_read(n))
    for x in cvt_tile(0, QP): e(x)
    for n in range(4, 8):
        if n % 2 == 0: e(k_addr(n >> 1))
        e(k_read(n))
    cv = [x for dt in range(1, 8) for x in cvt_tile(16*dt, QP+8*dt)]
    for n in range(32):
        dt = n >> 2; s_ = (n >> 1) & 1; kt = n & 1
        if n % 2 == 0: e(f"s_waitcnt lgkmcnt({min(6, 30-n)})")
        cin = "0" if n < 2 else vr(SA+16*kt, 16)
        e(f"{MF} {vr(SA+16*kt,16)}, {vr(kslot(n),4)}, {vr(QP+8*dt+4*s_,4)}, {cin}")
        if n >= 1:
            for _ in range(2):
                if cv: e(cv.pop(0))
        if n + 8 < 32:
            if n % 2 == 0: e(k_addr((n+8) >> 1))
            e(k_read(n+8))
    stamp(4)
    c("---- softmax over keys (32 in-lane values + partner half)")
    PP = 192
    e("s_nop 7"); e("s_nop 3")
    e(f"v_max3_f32 v{T0}, v{SA}, v{SA+1}, v{SA+2}")
    e(f"v_max3_f32 v{T1}, v{SA+16}, v{SA+17}, v{SA+18}")
    for i in range(3, 15, 2):
        e(f"v_max3_f32 v{T0}, v{T0}, v{SA+i}, v{SA+i+1}")
        e(f"v_max3_f32 v{T1}, v{T1}, v{SA+16+i}, v{SA+16+i+1}")
    e(f"v_max3_f32 v{T0}, v{T0}, v{SA+15}, v{SA+31}")
    e(f"v_max_f32 v{T0}, v{T0}, v{T1}")
    e(f"v_mov_b32 v{T1}, v{T0}"); e("s_nop 1")
    e(f"v_permlane32_swap_b32 v{T0}, v{T1}"); e("s_nop 1")
    e(f"v_max_f32 v{T0}, v{T0}, v{T1}")
    e("s_mov_b32 s12, 0x3db8aa3b ; 0.0625*log2(e)")
    e(f"v_mul_f32 v{T0}, s12, v{T0}")
    for i in range(0, 32, 2):
        e(f"v_pk_fma_f32 {vr(SA+i,2)}, {vr(SA+i,2)}, s[12:13], {vr(T0,2)} op_sel_hi:[1,0,0] neg_lo:[0,0,1] neg_hi:[0,0,1]")
        if i >= 2: e(f"v_exp_f32 v{SA+i-2}, v{SA+i-2}"); e(f"v_exp_f32 v{SA+i-1}, v{SA+i-1}")
        if i == 6: e(f"v_pk_add_f32 {vr(T2,2)}, {vr(SA,2)}, {vr(SA+2,2)}")
        if i > 6: e(f"v_pk_add_f32 {vr(T2,2)}, {vr(T2,2)}, {vr(SA+i-4,2)}")
    e(f"v_exp_f32 v{SA+30}, v{SA+30}"); e(f"v_exp_f32 v{SA+31}, v{SA+31}")
    e(f"v_pk_add_f32 {vr(T2,2)}, {vr(T2,2)}, {vr(SA+28,2)}"); e("s_nop 0")
    e(f"v_pk_add_f32 {vr(T2,2)}, {vr(T2,2)}, {vr(SA+30,2)}")
    e(f"v_add_f32 v{T0}, v{T2}, v{T3}")
    e(f"v_mov_b32 v{T1}, v{T0}"); e("s_nop 1")
    e(f"v_permlane32_swap_b32 v{T0}, v{T1}"); e("s_nop 1")
    e(f"v_add_f32 v{T0}, v{T0}, v{T1}")
    e(f"v_rcp_f32 v{T0}, v{T0}"); e("s_nop 0")
    for i in range(16):
        e(f"v_pk_mul_f32 {vr(SA+2*i,2)}, {vr(SA+2*i,2)}, {vr(T0,2)} op_sel_hi:[1,0]")
        if i: e(f"v_cvt_pk_bf16_f32 v{PP+i-1}, v{SA+2*i-2}, v{SA+2*i-1}")
    e(f"v_cvt_pk_bf16_f32 v{PP+15}, v{SA+30}, v{SA+31}")
    stamp(5)
    if opts["dry"]: e("s_cmp_eq_u32 s11, 1"); e("s_cbranch_scc1 L_nob29")
    e("s_barrier")
    lab("L_nob29")
    stamp(6)
    c("---- O^T = V^T P^T")
    VF = 208; OP = 128
    seq = [(2*dp+o, ks) for dp in range(4) for ks in range(4) for o in range(2)]
    def v_reads(n):
        dt, ks = seq[n]
        return [f"ds_read_b64_tr_b16 {vr(VF+4*(n&7)+2*u,2)}, v{AV+(dt&3)} offset:{(dt>>2)*256+(16*ks+8*u)*512}" for u in range(2)]
    PFD = 7
    for n in range(PFD):
        for r in v_reads(n): e(r)
    e(f"s_cmp_eq_u32 s{S_HH}, 0"); e("s_cbranch_scc0 L_pv1")
    for hh in range(2):
        if hh: lab("L_pv1")
        lg = []
        for n in range(PFD): lg += [n, n]
        def ex_write(dt):
            if hh: return
            e(f"ds_write_b128 v{AEW}, {vr(OP+8*dt,4)} offset:{2*dt*1024}"); e(f"ds_write_b128 v{AEW}, {vr(OP+8*dt+4,4)} offset:{(2*dt+1)*1024}")
            lg.extend(["w", "w"])
        for n, (dt, ks) in enumerate(seq):
            idx = max(i for i, t in enumerate(lg) if t == n); cnt = len(lg) - 1 - idx
            if opts["pvx"] < 2: e(f"s_waitcnt lgkmcnt({min(cnt,15)})")
            del lg[:idx+1]
            cin = "0" if ks == 0 else vr(16*dt, 16)
            e(f"{MF} {vr(16*dt,16)}, {vr(VF+4*(n&7),4)}, {vr(PP+4*ks,4)}, {cin}")
            if n + PFD < len(seq):
                for r in v_reads(n+PFD):
                    if opts["pvx"] < 2: e(r)
                    lg.append(n+PFD)
            if n >= 8 and opts["pvx"] in (0, -1):
                tl = 2*(n >> 3) - 2 + ((n >> 2) & 1)
                cv = cvt_tile(16*tl, OP+8*tl); e(cv[2*(n&3)]); e(cv[2*(n&3)+1])
                if n % 4 == 0 and tl >= 1 and opts["pvx"] == 0: ex_write(tl-1)
        if opts["pvx"] == -1:
            for tl in range(5): ex_write(tl)
        ex_write(5)
        e("s_nop 3")
        for x in cvt_tile(16*6, OP+48): e(x)
        ex_write(6)
        e("s_nop 3")
        for x in cvt_tile(16*7, OP+56): e(x)
        ex_write(7)
        if hh == 0: e("s_branch L_pvdone")
    lab("L_pvdone")
    e("s_waitcnt lgkmcnt(0)")
    if opts["dry"]: e("s_cmp_eq_u32 s11, 1"); e("s_cbranch_scc1 L_dryret")
    stamp(7)
    e("s_barrier")
    c("---- out projection: 7 passes of one 128-byte column block, K=512")
    PAR = 0; ACA = 64; ACB = 96; ACQ = 80
    sc = [" sc1", " sc0 sc1", " nt sc1", ""][opts["st_fl"]]
    S_ST = 10
    def o_rd(j, buf):
        return [f"ds_read_b64_tr_b16 {vr(buf+4*j+2*u,2)}, v{AOC} offset:{j*2048+u*1024}" for u in range(2)]
    def store_tile(acc):
        adds = [f"v_pk_add_f32 {vr(acc+2*i,2)}, {vr(acc+2*i,2)}, {vr(ACQ+2*i,2)}" for i in range(8)] if opts["qs"] == 3 else [f"v_add_f32 v{acc+i}, v{acc+i}, v{ACQ+i}" for i in range(16)]
        if opts["qs"] > 31: adds = []
        return adds + cvt_tile(acc, acc) + [
                                    f"buffer_store_dwordx4 {vr(acc,4)}, v{AST}, {srd(SWS)}, s{S_ST} offen{sc}",
                                    f"buffer_store_dwordx4 {vr(acc+4,4)}, v{AST}, {srd(SWS)}, s{S_ST} offen offset:1024{sc}",
                                    f"s_add_u32 s{S_ST}, s{S_ST}, 4096"] + ([f"s_cmp_eq_u32 s{S_ST}, {7*4096}", f"s_cselect_b32 s{S_ST}, 0, s{S_ST}"] if opts["rot"] else [])
    WF = [192, 16*7]
    def wf(buf, j):
        if buf == 0: return 192 + 4*j
        return 112 + 4*j if j < 4 else 224 + 4*(j-4)
    def o_reads(buf):
        return [f"ds_read_b64_tr_b16 {vr(wf(buf,j)+2*u,2)}, v{AOC} offset:{j*2048+u*1024}" for j in range(8) for u in range(2)]
    def o_upd():
        e(f"s_add_u32 s{S_SLOT}, s{S_SLOT}, 16384"); e(f"s_cmp_eq_u32 s{S_SLOT}, 163840"); e(f"s_cselect_b32 s{S_SLOT}, 0, s{S_SLOT}")
        e(f"s_cmp_eq_u32 s{S_SLOT}, 32768"); e(f"s_cselect_b32 s{S_SLOT}, 98304, s{S_SLOT}")
        e(f"v_add_u32 v{AOC}, s{S_SLOT}, v{AO}")
    def o_pass(hh, acc, prev, first):
        for st in range(4):
            cur = st & 1
            if st == 0: extra = store_tile(prev) if prev is not None else []
            exr = []
            if first and hh == 0 and st in (1,):
                exr = [f"ds_read_b128 {vr(PAR+4*i,4)}, v{AER} offset:{i*1024}" for i in range(16)]
            if first and hh == 1 and st == 0 and opts["wil"]:
                exr = [f"ds_write_b128 v{AEW}, {vr(OP+4*i,4)} offset:{i*1024}" for i in range(16)]
            rd = o_reads(cur ^ 1) if not opts['onoread'] else []
            for j in range(8):
                kk = 8*st + j
                b = (OP if (kk >> 4) == hh else PAR) + 4*(kk & 15)
                ac = ACQ if (kk & 1 and kk >= opts["qs"]) else acc
                cin = "0" if kk in (0, opts["qs"]) else vr(ac, 16)
                if j == 0: e("s_waitcnt lgkmcnt(14)")
                e(f"{MF} {vr(ac,16)}, {vr(wf(cur,j),4)}, {vr(b,4)}, {cin}")
                if j == 0:
                    e("s_waitcnt lgkmcnt(0)")
                    if opts["bo"] == 1 or st & 1: e("s_barrier")
                if j < 7:
                    for _ in range(3 if (j % 3) != 2 else 2):
                        if exr: e(exr.pop(0))
                    for _ in range(1 if j == 0 else 3):
                        if rd: e(rd.pop(0))
                if j == 6: o_upd()
                if kk >= 1:
                    for _ in range((4 if j < 3 else 3) if opts["qs"] == 3 else 2):
                        if extra: e(extra.pop(0))
            assert not rd and not exr and (st < 2 or not extra), (rd, extra, exr)
    e(f"s_mov_b32 s{S_SLOT}, 98304"); e(f"v_add_u32 v{AOC}, s{S_SLOT}, v{AO}")
    e(f"s_mov_b32 s{S_ST}, 0"); e(f"s_mov_b32 s{S_CNT}, 3")
    if opts["er"]:
        e(f"v_mbcnt_lo_u32_b32 v{T0}, -1, 0"); e(f"v_lshlrev_b32 v{T0}, 8, v{T0}"); e(f"v_mov_b32 v{T1}, 1")
        e(f"s_lshl_b32 s12, s{S_HP}, 2"); e(f"s_add_u32 s12, s12, s{S_WAVE}"); e("s_lshl_b32 s12, s12, 2")
    if opts["rot"]:
        e(f"s_mul_i32 s6, s{S_B}, 37"); e("s_lshr_b32 s6, s6, 8"); e("s_mul_i32 s6, s6, 7"); e(f"s_sub_u32 s6, s{S_B}, s6"); e(f"s_lshl_b32 s{S_ST}, s6, 12")
    e(f"s_cmp_eq_u32 s{S_HH}, 0"); e("s_cbranch_scc0 L_oh1")
    for hh in range(2):
        if hh == 1:
            lab("L_oh1")
            for i in range(8): e(f"ds_read_b128 {vr(PAR+4*i,4)}, v{AER} offset:{i*1024}")
        for r in o_reads(0): e(r)
        o_upd()
        if hh == 1:
            for i in range(8, 16): e(f"ds_read_b128 {vr(PAR+4*i,4)}, v{AER} offset:{i*1024}")
            if not opts["wil"]:
                for i in range(16): e(f"ds_write_b128 v{AEW}, {vr(OP+4*i,4)} offset:{i*1024}")
                e("s_waitcnt lgkmcnt(15)")
        o_pass(hh, ACA, None, True)
        lab(f"L_oloop{hh}")
        o_pass(hh, ACB, ACA, False)
        if opts["er"] == 1:
            c("last trip: passes 0..3 of this wave are at the coherence point -> hand-off flag A")
            e(f"s_cmp_lg_u32 s{S_CNT}, 1"); e(f"s_cbranch_scc1 L_noA{hh}")
            e("s_waitcnt vmcnt(2)"); e("s_mov_b64 exec, 0xff")
            e(f"buffer_store_dword v{T1}, v{T0}, {srd(SFLG)}, s12 offen sc1")
            e("s_mov_b64 exec, -1")
            lab(f"L_noA{hh}")
        o_pass(hh, ACA, ACB, False)
        e(f"s_sub_u32 s{S_CNT}, s{S_CNT}, 1"); e(f"s_cmp_lg_u32 s{S_CNT}, 0"); e(f"s_cbranch_scc1 L_oloop{hh}")
        if hh == 0: e("s_branch L_odone")
    lab("L_odone")
    stamp(8)
    e("s_nop 7"); e("s_nop 3")
    for x in store_tile(ACA): e(x)
    if opts["fused"]:
        e("s_waitcnt vmcnt(0)")
        stamp(9)
        if opts["er"]:
            e("s_mov_b64 exec, 0xff")
            e(f"buffer_store_dword v{T1}, v{T0}, {srd(SFLG)}, s12 offen offset:128 sc1")
            e("s_mov_b64 exec, -1")
            if opts["er"] == 1:
                e(f"s_cmp_eq_u32 s{S_WAVE}, 3"); e("s_cbranch_scc1 L_end")
                e(f"s_add_u32 s12, s{S_WAVE}, 4")
            else: e(f"s_mov_b32 s12, s{S_WAVE}")
            e("s_movk_i32 s13, 128")
            tail2()
        else: tail()
    else:
        dump_stamps(10)
        e("s_endpgm")

def dump_stamps(n):
    if opts["stamps"]:
        e(f"s_cmp_lg_u32 s{S_WAVE}, 0"); e("s_cbranch_scc1 L_end")
        e("s_waitcnt vmcnt(0)")
        stamp(n-1)
        e("s_waitcnt lgkmcnt(0)")
        e("s_memrealtime s[6:7]")
        e("s_lshl_b32 s68, s2, 6"); e("s_add_u32 s68, s68, 0x8000000"); make_srd(SDBG, 28, 68, 64)
        e("v_mov_b32 v1, 0")
        e("s_getreg_b32 s68, hwreg(HW_REG_XCC_ID)"); e("v_mov_b32 v2, s68"); e(f"buffer_store_dword v2, v1, {srd(SDBG)}, 0 offen offset:56")
        e("s_waitcnt lgkmcnt(0)")
        e("v_mov_b32 v2, s14"); e(f"buffer_store_dword v2, v1, {srd(SDBG)}, 0 offen offset:0")
        e("v_mov_b32 v2, s6"); e(f"buffer_store_dword v2, v1, {srd(SDBG)}, 0 offen offset:60")
        for i in range(1, n):
            e(f"s_sub_u32 s68, s{SB+2*i}, s{SB}"); e("v_mov_b32 v2, s68")
            e(f"buffer_store_dword v2, v1, {srd(SDBG)}, 0 offen offset:{4*i}")

def tail():
    lab("L_tail")
    c("================= cross-workgroup reduction =================")
    e("s_barrier")
    e("v_mbcnt_lo_u32_b32 v0, -1, 0"); e("v_mbcnt_hi_u32_b32 v0, -1, v0")
    if not opts["rowmap"]: e(f"s_lshl_b32 s64, s{S_BR}, 4"); e(f"s_add_u32 s64, s64, s{S_B}")
    e(f"s_cmp_lg_u32 s{S_WAVE}, 7"); e("s_cbranch_scc1 L_nopoll")
    if opts["flg"]:
        e("s_mov_b64 exec, 0xff")
        e(f"buffer_store_dword v2, v4, {srd(SFLG)}, 0 offen sc1")
        e(f"s_mov_b32 s{S_CNT}, 0x40000")
        lab("L_poll")
        e(f"buffer_load_dword v3, v1, {srd(SFLG)}, 0 offen sc1")
        e("s_waitcnt vmcnt(0)")
        e("v_cmp_eq_u32 vcc, 1, v3")
        e("s_cmp_eq_u32 vcc_lo, 0xff"); e("s_cbranch_scc1 L_polled")
        if opts["sleep"]: e(f"s_sleep {opts['sleep']}")
        e(f"s_sub_u32 s{S_CNT}, s{S_CNT}, 1"); e(f"s_cmp_lg_u32 s{S_CNT}, 0"); e("s_cbranch_scc1 L_poll")
    else:
        e("s_lshl_b32 s68, s64, 3"); make_srd(SDBG, 26, 68, 4)
        e("v_mov_b32 v1, 0"); e("v_mov_b32 v2, 1")
        e("s_mov_b64 exec, 1")
        e(f"buffer_atomic_add v2, v1, {srd(SDBG)}, 0 offen sc1")
        e(f"s_mov_b32 s{S_CNT}, 0x40000")
        lab("L_poll")
        e(f"buffer_load_dword v3, v1, {srd(SDBG)}, 0 offen sc1")
        e("s_waitcnt vmcnt(0)")
        e("v_readfirstlane_b32 s68, v3")
        e("s_cmp_ge_u32 s68, 8"); e("s_cbranch_scc1 L_polled")
        e(f"s_sleep {opts['sleep']}")
        e(f"s_sub_u32 s{S_CNT}, s{S_CNT}, 1"); e(f"s_cmp_lg_u32 s{S_CNT}, 0"); e("s_cbranch_scc1 L_poll")
    lab("L_polled")
    e("s_mov_b64 exec, -1")
    e("s_barrier")
    e("s_endpgm")
    lab("L_nopoll")
    if opts["rowmap"]: e(f"s_mov_b32 s12, s{S_WAVE}"); reduce_setup2()
    else:
        e(f"s_mul_i32 s66, s{S_HP}, 7"); e(f"s_add_u32 s66, s66, s{S_WAVE}")
        reduce_setup()
    e("s_barrier")
    stamp(10)
    reduce_body(" sc1")
    dump_stamps(12)
    e("s_endpgm")

def reduce_setup2():
    e(f"s_lshl_b32 s68, s{S_BR}, 4"); e(f"s_add_u32 s68, s68, s{S_B}")
    e("s_mul_i32 s68, s68, 458752"); make_srd(SWS, 28, 68, 458752)
    e("s_mov_b32 s68, 0"); make_srd(SOUT, 24, 68, 1835008)
    e("v_lshrrev_b32 v2, 4, v0"); e("v_bfe_u32 v3, v0, 3, 1"); e("v_and_b32 v4, 7, v0")
    e("v_lshlrev_b32 v1, 10, v2"); e("v_lshl_add_u32 v1, v3, 9, v1"); e("v_lshl_add_u32 v1, v4, 4, v1")
    e(f"s_lshr_b32 s69, s{S_HP}, 2"); e("s_mul_i32 s69, s69, 28672"); e(f"s_and_b32 s70, s{S_HP}, 3"); e("s_lshl_b32 s70, s70, 7")
    e("s_lshl_b32 s68, s12, 12"); e("s_add_u32 s68, s68, s69"); e("s_add_u32 s68, s68, s70")
    e("v_mul_u32_u24 v4, 1792, v4"); e("v_lshl_add_u32 v4, v3, 5, v4"); e("v_lshrrev_b32 v3, 1, v2"); e("v_lshl_add_u32 v4, v3, 6, v4")
    e("v_and_b32 v3, 1, v2"); e("v_lshl_add_u32 v2, v3, 4, v4")
    e(f"s_lshl_b32 s72, s{S_B}, 3"); e(f"s_add_u32 s72, s72, s{S_HP}"); e("s_mul_i32 s72, s72, 14336")
    e(f"s_mul_i32 s69, s{S_BR}, 896"); e("s_add_u32 s72, s72, s69"); e("s_lshl_b32 s69, s12, 7"); e("s_add_u32 s72, s72, s69")

def tail2():
    lab("L_tail2")
    c("================= cross-workgroup reduction: rows 8*hp..8*hp+7 of the group's tile, block s12 =================")
    e("v_mbcnt_lo_u32_b32 v0, -1, 0"); e("v_mbcnt_hi_u32_b32 v0, -1, v0")
    e(f"s_lshl_b32 s68, s{S_HP}, 8"); e("s_add_u32 s13, s13, s68")
    e("v_and_b32 v6, 31, v0"); e("v_lshlrev_b32 v6, 2, v6")
    e(f"buffer_load_dword v7, v6, {srd(SFLG)}, s13 offen sc1")
    reduce_setup2()
    e(f"s_mov_b32 s{S_CNT}, 0x40000")
    lab("L_poll2")
    e("s_waitcnt vmcnt(0)")
    e("v_cmp_ne_u32 vcc, 1, v7")
    e("s_cbranch_vccz L_polled2")
    if opts["sleep"]: e(f"s_sleep {opts['sleep']}")
    e(f"buffer_load_dword v7, v6, {srd(SFLG)}, s13 offen sc1")
    e(f"s_sub_u32 s{S_CNT}, s{S_CNT}, 1"); e(f"s_cmp_lg_u32 s{S_CNT}, 0"); e("s_cbranch_scc1 L_poll2")
    lab("L_polled2")
    stamp(10)
    reduce_body(" sc1")
    dump_stamps(12)
    e("s_endpgm")

def loader():
    lab("L_loader")
    c("================= loader waves 4..7 =================")
    S_LW = 76
    VQ, VX, VO, VK, VL, VW, VPF, DUM, VD = 8, 12, 16, 20, 28, 29, 32, 36, 64
    ntk = ["", " nt", " sc1", " sc0 sc1", " sc1 nt", " sc0 sc1 nt", " sc0", " sc0 nt"][opts["nt_kv"]]; ntp = " nt" if opts["nt_pf"] else ""; ntr = " nt" if opts["nt_ring"] else ""
    ntx = " nt" if opts["nt_x"] else ""
    vm = VM()
    e(f"s_sub_u32 s{S_LW}, s{S_WAVE}, 4")
    def q_pf(t):
        ws = [w for w in range(4) if ([-1, opts["pq1"], opts["pq2"], opts["pq3"]][w] == t)]
        if not ws or not (opts["pfq"] & 1): return
        if len(ws) < 4:
            e(f"s_lshl_b32 s68, 1, s{S_LW}"); e(f"s_and_b32 s68, s68, {sum(1 << w for w in ws)}"); e("s_cselect_b64 exec, -1, 0")
        e(f"buffer_load_dword v{DUM}, v{VPF}, {srd(SWQ)}, s7 offen{ntp}"); vm.add("pf")
        if len(ws) < 4: e("s_mov_b64 exec, -1")
    def do_pf():
        c("L2 line prefetch: Wq row (16t+b), x half")
        e("v_lshrrev_b32 v1, 3, v0"); e("v_and_b32 v2, 7, v0"); e("v_lshlrev_b32 v2, 7, v2"); e(f"v_lshl_add_u32 v{VPF}, v1, 17, v2")
        e(f"s_lshl_b32 s68, s{S_LW}, 20"); e(f"s_lshl_b32 s69, s{S_B}, 13"); e("s_add_u32 s68, s68, s69")
        e("s_mov_b32 s7, s68")
        q_pf(-1)
        e("v_and_b32 v1, 31, v0"); e("v_mul_u32_u24 v1, 896, v1"); e("v_lshrrev_b32 v2, 5, v0"); e(f"v_lshl_add_u32 v{VPF+1}, v2, 7, v1")
        e(f"s_mul_i32 s68, s{S_PAIR}, 28672"); e(f"s_lshl_b32 s69, s{S_LW}, 8"); e("s_add_u32 s68, s68, s69")
        if opts["pfq"] & 2: e(f"buffer_load_dword v{DUM}, v{VPF+1}, {srd(SX)}, s68 offen{ntx}"); vm.add("pf")
    if not opts['rf']: do_pf()
    c("K dma patterns")
    S_KV = 77
    e("v_lshrrev_b32 v1, 5, v0"); e("v_and_b32 v2, 31, v0"); e("v_xor_b32 v3, v2, v1"); e("v_lshlrev_b32 v3, 4, v3")
    e("v_lshl_add_u32 v3, v1, 9, v3")
    for n in range(8): e(f"v_xor_b32 v{VK+n}, {(2*n)<<4}, v3")
    e(f"s_lshl_b32 s{S_KV}, s{S_LW}, 14")
    KD = 128
    def k_load(n):
        if DEEP:
            e(f"s_add_u32 s{S_SOFF}, s{S_KV}, {n*1024}")
            e(f"buffer_load_dwordx4 {vr(KD+4*n,4)}, v{VK+n%8}, {srd(SK)}, s{S_SOFF} offen{ntk}"); vm.add(("k", n)); return
        e(f"s_add_u32 s{S_SOFF}, s{S_KV}, {n*1024}"); e(f"s_add_u32 m0, s{S_SOFF}, {KR}"); e("s_nop 0")
        e(f"buffer_load_dwordx4 v{VK+n%8}, {srd(SK)}, s{S_SOFF} offen{ntk} lds"); vm.add("k")
    def v_load(n):
        e(f"s_add_u32 s{S_SOFF}, s{S_KV}, {(n&~3)*1024}")
        e(f"buffer_load_dwordx4 {vr(VD+4*n,4)}, v{VL}, {srd(SV)}, s{S_SOFF} offen offset:{(n&3)*1024}{ntk}"); vm.add(("v", n))
    def wo_pf(lo=0, hi=None):
        if hi is None: hi = opts["ws1"]
        if lo >= hi: return
        mask = sum(1 << l for l in range(56) if lo <= l % 7 < hi)
        e(f"s_mov_b32 exec_lo, {mask & 0xffffffff:#x}"); e(f"s_mov_b32 exec_hi, {mask >> 32:#x}")
        wo_pf0()
        e("s_mov_b64 exec, -1")
    def wo_pf0():
        e(f"s_mul_i32 s68, s{S_B}, 28672"); e(f"s_mul_i32 s69, s{S_LW}, 7168"); e("s_add_u32 s68, s68, s69")
        e(f"v_lshlrev_b32 v6, 7, v0")
        fl = ["", " nt", " sc0 nt", " nt sc1", " sc0 nt sc1", " sc0", " sc1"][opts["wo_fl"]]
        if opts["wo_full"]:
            for i in range(7):
                e(f"buffer_load_dwordx4 {vr(DUM,4)}, v{VL}, {srd(SWO)}, s68 offen{fl}"); vm.add("pf"); e("s_add_u32 s68, s68, 1024")
        else:
            e(f"buffer_load_dword v{DUM}, v6, {srd(SWO)}, s68 offen{fl}"); vm.add("pf")
    miss = [(k_load, n) for n in range(16)] + [(v_load, n) for n in range(16)]
    if opts["pf"]: miss.insert(int(opts["wo_pos"]), (lambda n: wo_pf(), 0))
    def do_miss(cnt):
        for _ in range(cnt):
            if miss: f, n = miss.pop(0); f(n)
    e(f"v_lshlrev_b32 v{VL}, 4, v0")
    if not opts['rf']: do_miss(opts["m_pre"])
    for r in range(4):
        e(f"v_xor_b32 v1, {r<<2}, v0"); e(f"v_lshlrev_b32 v1, 4, v1"); e(f"v_add_u32 v{VQ+r}, {r*7168}, v1")
    e("v_lshrrev_b32 v2, 3, v0"); e("v_mul_u32_u24 v2, 896, v2"); e("v_and_b32 v3, 7, v0"); e("v_lshrrev_b32 v4, 4, v0")
    for n in range(2):
        e(f"v_add_u32 v5, {4*(n&1)}, v4"); e("v_xor_b32 v5, v5, v3"); e("v_lshl_add_u32 v5, v5, 4, v2")
        e(f"v_add_u32 v{VX+n}, {n*6144}, v5")
    S_QB, S_XB, S_LQ, S_LX, S_OB, S_LO = 4, 5, 30, 31, 62, 63
    e(f"s_lshl_b32 s{S_QB}, s{S_LW}, 15")
    e(f"s_lshl_b32 s{S_LQ}, s{S_LW}, 12")
    e(f"s_mul_i32 s{S_XB}, s{S_LW}, 14336")
    e(f"s_lshl_b32 s{S_LX}, s{S_LW}, 11"); e(f"s_add_u32 s{S_LX}, s{S_LX}, {XR}")
    def q_stage(t):
        e(f"s_add_u32 m0, s{S_LQ}, {(t%NSQ)*16384}")
        e(f"s_add_u32 s{S_SOFF}, s{S_QB}, {16*t*8192}")
        for r in range(4):
            off = f" offset:{r*1024}" if r else ""
            e(f"buffer_load_dwordx4 v{VQ+r}, {srd(SWQ)}, s{S_SOFF} offen{off}{ntr} lds"); vm.add(("q", t))
    def x_chunk(X):
        e(f"s_add_u32 m0, s{S_LX}, {(X%NXS)*8192}")
        e(f"s_add_u32 s{S_SOFF}, s{S_XB}, {X*128}")
        for n in range(2):
            off = f" offset:{n*1024}" if n else ""
            e(f"buffer_load_dwordx4 v{VX+n}, {srd(SX)}, s{S_SOFF} offen{off}{ntx} lds"); vm.add(("x", X))
    OSL = [98304, 114688, 131072, 147456, 0, 16384]
    def o_stage(t):
        e(f"s_add_u32 m0, s{S_LQ}, {OSL[t%6]}")
        if opts["rot"]:
            if t % 4 == 0 and t:
                e("s_add_u32 s6, s6, 128"); e("s_cmp_eq_u32 s6, 896"); e("s_cselect_b32 s6, 0, s6"); e(f"s_add_u32 s7, s6, s{S_OB}")
            e(f"s_add_u32 s{S_SOFF}, s7, {128*(t%4)*896}")
        else: e(f"s_add_u32 s{S_SOFF}, s{S_OB}, {128*(t%4)*896 + (t//4)*128}")
        nto = " nt" if opts["nt_ringo"] else ""
        for n in range(4):
            off = f" offset:{n*1024}" if n else ""
            if not (opts["onoload"] and t > 5): e(f"buffer_load_dwordx4 v{VO+n}, {srd(SWO)}, s{S_SOFF} offen{off}{nto} lds"); vm.add(("o", t))
    RST = [opts["r0"] + opts["rstep"]*i for i in range(opts["nreg"])]
    WR = 128
    rq = list(range(opts["nreg"]))
    def r_load(cnt):
        for _ in range(cnt):
            if not rq: return
            i = rq.pop(0); t = RST[i]
            e(f"s_add_u32 s{S_SOFF}, s{S_OB}, {128*(t%4)*896 + (t//4)*128}")
            for n in range(4):
                off = f" offset:{n*1024}" if n else ""
                e(f"buffer_load_dwordx4 {vr(WR+16*i+4*n,4)}, v{VO+n}, {srd(SWO)}, s{S_SOFF} offen{off}"); vm.add(("r", t))
    def o_fill(t):
        if t not in RST: return o_stage(t)
        i = RST.index(t)
        vm.wait([("r", t)])
        e(f"s_add_u32 s68, s{S_LQ}, {OSL[t%6]}"); e(f"v_add_u32 v5, s68, v{VL}")
        for n in range(4): e(f"ds_write_b128 v5, {vr(WR+16*i+4*n,4)} offset:{n*1024}")
    x_chunk(0)
    if opts['rf'] == 2:
        q_stage(0); q_stage(1); do_pf(); q_stage(2); q_stage(3); x_chunk(1); q_stage(4); do_miss(opts["m_pre"])
    else:
        for t in range(4): q_stage(t)
        x_chunk(1)
        if not (DEEP and opts["init4"]): q_stage(4)
        if DEEP and not opts["init4"]:
            if opts['rf'] == 3: do_pf()
            q_stage(5); q_stage(6); q_stage(7); x_chunk(2); x_chunk(3)
        if opts['rf'] == 1: do_pf()
        if opts['rf']: do_miss(opts["m_pre"])
    do_miss(opts["m_post"])
    c("remaining address setup (off the critical path)")
    e("v_lshrrev_b32 v1, 3, v0"); e("v_mul_u32_u24 v1, 896, v1"); e("v_and_b32 v2, 7, v0"); e("v_bfe_u32 v3, v0, 4, 1")
    e("v_lshlrev_b32 v3, 2, v3"); e("v_xor_b32 v2, v2, v3"); e("v_lshl_add_u32 v1, v2, 4, v1")
    for n in range(4): e(f"v_add_u32 v{VO+n}, {n*6144}, v1")
    e(f"s_mul_i32 s{S_OB}, s{S_LW}, 28672")
    if opts["rot"]:
        e(f"s_mul_i32 s6, s{S_B}, 37"); e("s_lshr_b32 s6, s6, 8"); e("s_mul_i32 s6, s6, 7"); e(f"s_sub_u32 s6, s{S_B}, s6")
        e("s_lshl_b32 s6, s6, 7"); e(f"s_add_u32 s7, s6, s{S_OB}")
    e("v_lshrrev_b32 v1, 5, v0"); e("v_and_b32 v2, 31, v0")
    for par in range(2):
        e(f"v_or_b32 v4, {2*par}, v1"); e("v_lshlrev_b32 v4, 2, v4"); e("v_xor_b32 v4, v4, v2"); e("v_lshlrev_b32 v4, 4, v4")
        e("v_lshl_add_u32 v4, v1, 9, v4"); e(f"v_add_u32 v{VW+par}, s{S_KV}, v4")
    def qphase(grp):
        acc = opts["mfirst"]
        BQ = opts["bq"]
        for t in range(0, 29, BQ):
            if t < 28: vm.wait([("q", t), ("q", t+BQ-1), ("x", t//4)])
            elif DEEP: e("s_waitcnt lgkmcnt(0)")
            else:
                while miss and miss[0][0] is k_load: do_miss(1)
                vm.wait(["k"])
            e(f"s_barrier ; B{t}")
            if t == 0 and DEEP and opts["init4"]:
                if grp is not None and opts[f"k{grp}"] < 0: do_miss(16)
                if grp is not None and opts[f"v{grp}"] < 0: do_miss(99)
                q_stage(4); q_stage(5); q_stage(6); q_stage(7); x_chunk(2); x_chunk(3)
            for u in range(t + NSQ - BQ, t + NSQ):
                if t >= 1 and u < 28: q_stage(u)
            if t >= 4 and t % 4 == 0 and t//4 + NXS - 1 <= 6: x_chunk(t//4 + NXS - 1)
            if DEEP and t == opts["kw_at"]:
                while miss and miss[0][0] is k_load: do_miss(1)
                e(f"s_add_u32 s68, s{S_KV}, {KR}"); e(f"v_add_u32 v1, s68, v{VL}")
                for n in range(16):
                    if n % 4 == 0: vm.wait([("k", n+3)])
                    e(f"ds_write_b128 v1, {vr(KD+4*n,4)} offset:{n*1024}")
            if grp is None:
                acc += BQ * opts["m_rate"] / 100.0
                q_pf(t)
                n = int(acc) if t % opts["mb"] == 0 else 0
                acc -= n; do_miss(n)
                if 28 - opts["rpre"] <= t < 28 and not miss: r_load(1)
            else:
                if t == opts[f"k{grp}"]: do_miss(16)
                if t == opts[f"v{grp}"]: do_miss(99)
        do_miss(99)
        if opts["wt2"] == -3: wo_pf(opts["ws1"], opts["ws2"])
        r_load(99)
        for n in range(16):
            if n % 4 == 0: vm.wait([("v", n+3)])
            e(f"ds_write_b128 v{VW+(n&1)}, {vr(VD+4*n,4)} offset:{n*1024}")
    if opts["stag"]:
        c("K/V miss bursts are staggered over batch groups (b&3): each CU streams L2 hits at full rate outside its burst")
        e(f"s_and_b32 s68, s{S_B}, 3")
        for g in range(1, 4): e(f"s_cmp_eq_u32 s68, {g}"); e(f"s_cbranch_scc1 L_qg{g}")
        ops0 = list(vm.ops); miss0 = list(miss)
        for g in range(4):
            lab(f"L_qg{g}")
            vm.ops = list(ops0); miss[:] = miss0
            qphase(g)
            vm.wait(["pf"]); assert not vm.ops, vm.ops
            if g < 3: e("s_branch L_qgdone")
        lab("L_qgdone")
    else: qphase(None)
    e("s_waitcnt lgkmcnt(0)")
    e("s_barrier ; B29")
    if opts["wt2"] == -2: wo_pf(opts["ws1"], opts["ws2"])
    for t in range(0, 4): o_stage(t)
    if opts["wt2"] == -1: wo_pf(opts["ws1"], opts["ws2"])
    BO = opts["bo"]
    for t in range(0, 29, BO):
        if t < 28: vm.wait([("o", t), ("o", t+BO-1)])
        if t in RST or t+BO-1 in RST: e("s_waitcnt lgkmcnt(0)")
        e(f"s_barrier ; B'{t}")
        if t == 0: o_stage(4); o_stage(5)
        if t == opts["wt2"]: wo_pf(opts["ws1"], opts["ws2"])
        if t == opts["wt3"]: wo_pf(max(opts["ws1"], opts["ws2"]), 7)
        for u in range(t + 6 - BO, t + 6):
            if t >= 1 and u < 28: o_fill(u)
        if t == 16 and opts["er"]:
            c("wave 7: all hand-off lines of the group were reset (normally true long ago)")
            e(f"s_cmp_lg_u32 s{S_WAVE}, 7"); e("s_cbranch_scc1 L_rpolled")
            e(f"s_mov_b32 s{S_CNT}, 0x40000")
            lab("L_rpoll")
            e("v_readfirstlane_b32 s68, v3")
            e("s_cmp_ge_u32 s68, 8"); e("s_cbranch_scc1 L_rpolled")
            e("s_sleep 8")
            e(f"buffer_load_dword v3, v1, {srd(SDBG)}, 0 offen sc1"); e("s_waitcnt vmcnt(0)")
            e(f"s_sub_u32 s{S_CNT}, s{S_CNT}, 1"); e(f"s_cmp_lg_u32 s{S_CNT}, 0"); e("s_cbranch_scc1 L_rpoll")
            lab("L_rpolled")
        if t == (9 if opts["er"] else 22) and opts["flg"]:
            e(f"s_cmp_eq_u32 s{S_WAVE}, 7"); e("v_mov_b32 v1, 0"); e("v_mov_b32 v3, 0"); e("s_cselect_b64 exec, 1, 0")
            e(f"buffer_load_dword v3, v1, {srd(SDBG)}, 0 offen sc1"); vm.add("chk")
            e("s_mov_b64 exec, -1")
    if opts["er"]:
        if opts["er"] == 1: e(f"s_mov_b32 s12, s{S_LW}"); e("s_mov_b32 s13, 0")
        else:
            e(f"s_cmp_eq_u32 s{S_WAVE}, 7"); e("s_cbranch_scc1 L_end")
            e(f"s_mov_b32 s12, s{S_WAVE}"); e("s_movk_i32 s13, 128")
        e("s_branch L_tail2")
        return
    if opts["flg"]:
        c("wave 7: all hand-off lines of the group were reset (normally true long ago)")
        e(f"s_cmp_lg_u32 s{S_WAVE}, 7"); e("s_cbranch_scc1 L_tail")
        e(f"s_mov_b32 s{S_CNT}, 0x40000")
        e("s_branch L_rchk")
        lab("L_rpoll")
        e(f"buffer_load_dword v3, v1, {srd(SDBG)}, 0 offen sc1")
        lab("L_rchk")
        e("s_waitcnt vmcnt(0)")
        e("v_readfirstlane_b32 s68, v3")
        e("s_cmp_ge_u32 s68, 8"); e("s_cbranch_scc1 L_rpolled")
        e("s_sleep 8")
        e(f"s_sub_u32 s{S_CNT}, s{S_CNT}, 1"); e(f"s_cmp_lg_u32 s{S_CNT}, 0"); e("s_cbranch_scc1 L_rpoll")
        lab("L_rpolled")
        fs = opts["fstride"]
        e(f"s_lshl_b32 s68, s{S_HP}, {fs}"); e(f"v_lshlrev_b32 v1, {opts['pl']}, v0"); e("v_add_u32 v1, s68, v1")
        e(f"s_lshl_b32 s68, s{S_HP}, {opts['pl']}"); e(f"v_lshlrev_b32 v4, {fs}, v0"); e("v_add_u32 v4, s68, v4")
        e("v_mov_b32 v2, 1")
    e("s_branch L_tail" if opts["fused"] else "s_endpgm")

def reduce_setup():
    e("s_mul_i32 s68, s64, 458752"); make_srd(SWS, 28, 68, 458752)
    e("s_mov_b32 s68, 0"); make_srd(SOUT, 24, 68, 1835008)
    e("v_lshlrev_b32 v1, 4, v0")
    e("s_and_b32 s69, s66, 1"); e("s_lshr_b32 s70, s66, 1")
    e("s_cmp_ge_u32 s70, 14"); e("s_cselect_b32 s71, 1, 0"); e("s_mul_i32 s72, s71, 14"); e("s_sub_u32 s70, s70, s72")
    e("s_and_b32 s72, s64, 15"); e("s_lshr_b32 s73, s64, 4")
    e("s_lshl_b32 s72, s72, 1"); e("s_add_u32 s72, s72, s71"); e("s_mul_i32 s72, s72, 57344")
    e("s_mul_i32 s73, s73, 896"); e("s_add_u32 s72, s72, s73"); e("s_lshl_b32 s70, s70, 6"); e("s_add_u32 s72, s72, s70")
    e("s_lshl_b32 s69, s69, 4"); e("s_add_u32 s72, s72, s69")
    e("v_and_b32 v2, 31, v0"); e("v_mul_u32_u24 v2, 1792, v2"); e("v_lshrrev_b32 v3, 5, v0"); e("v_lshl_add_u32 v2, v3, 5, v2")
    e("s_lshl_b32 s68, s66, 10")

def reduce_body(fl):
    for j in range(8):
        e(f"buffer_load_dwordx4 {vr(8+4*j,4)}, v1, {srd(SWS)}, s68 offen{fl}")
        if j < 7: e("s_add_u32 s68, s68, 57344")
    for j in range(8):
        e(f"s_waitcnt vmcnt({7-j})")
        for i in range(4):
            if j == 0:
                e(f"v_lshlrev_b32 v{40+2*i}, 16, v{8+i}"); e(f"v_and_b32 v{41+2*i}, 0xffff0000, v{8+i}")
            else:
                e(f"v_lshlrev_b32 v4, 16, v{8+4*j+i}"); e(f"v_and_b32 v5, 0xffff0000, v{8+4*j+i}")
                e(f"v_add_f32 v{40+2*i}, v{40+2*i}, v4"); e(f"v_add_f32 v{41+2*i}, v{41+2*i}, v5")
    for i in range(4): e(f"v_cvt_pk_bf16_f32 v{48+i}, v{40+2*i}, v{41+2*i}")
    e(f"buffer_store_dwordx4 v[48:51], v2, {srd(SOUT)}, s72 offen")

def reduce_kernel():
    lab("reduce_kernel")
    e("s_cmp_ge_u32 s2, 256"); e("s_cbranch_scc1 R_end")
    e("s_load_dwordx2 s[24:25], s[0:1], 80")
    e("s_load_dwordx2 s[28:29], s[0:1], 96")
    e("v_lshrrev_b32 v1, 6, v0"); e("v_and_b32 v0, 63, v0"); e("s_nop 0"); e("v_readfirstlane_b32 s3, v1")
    e("s_lshr_b32 s64, s2, 3"); e("s_and_b32 s65, s2, 7")
    e("s_mul_i32 s66, s65, 7"); e("s_add_u32 s66, s66, s3")
    e("s_waitcnt lgkmcnt(0)")
    reduce_setup()
    reduce_body("")
    lab("R_end")
    e("s_endpgm")

def kd(name, vg, sg=102):
    return f""".amdhsa_kernel {name}
  .amdhsa_next_free_vgpr {vg}
  .amdhsa_next_free_sgpr {sg}
  .amdhsa_accum_offset {(vg+3)//4*4}
  .amdhsa_group_segment_fixed_size 0
  .amdhsa_kernarg_size 104
  .amdhsa_user_sgpr_count 2
  .amdhsa_user_sgpr_kernarg_segment_ptr 1
  .amdhsa_system_sgpr_workgroup_id_x 1
.end_amdhsa_kernel"""

MK = NAME + "_kernel" if opts["fused"] else "main_kernel"
hdr = "; Fused 2-branch cached-MHA block (Q-proj, attention, out-proj) for gfx950 -- generated by gen/gen.py\n"
if opts["fused"]: hdr += "; @launch grid=(256,1,1) block=(512,1,1) lds=163840\n"
else: hdr += "; @launch kernel=main_kernel grid=(256,1,1) block=(512,1,1) lds=163840\n; @launch kernel=reduce_kernel grid=(256,1,1) block=(448,1,1) lds=0\n"
hdr += '.amdgcn_target "amdgcn-amd-amdhsa--gfx950"\n.text'
out = [hdr, f".globl {MK}", ".p2align 8", f".type {MK},@function"]
main_kernel(); out += L; L.clear()
if not opts["fused"]:
    out += [".globl reduce_kernel", ".p2align 8", ".type reduce_kernel,@function"]
    reduce_kernel(); out += L; L.clear()
out += ['.section .rodata,"a"', ".p2align 6", kd(MK, 256)]
if not opts["fused"]: out += [".p2align 6", kd("reduce_kernel", 56)]
open(sys.argv[1], "w").write("\n".join(out) + "\n")
```

```python
import sys
NAME = "concat_heads__mha_block_cached__mha_block_cached__near_ridge"
opts = dict(ofl=0, od=0, rpos=1, ini=4, ws1=1, ws2=7, wt2=-1, wt3=8, pq1=-1, pq2=4, pq3=12, pfq=1, mb=4, mfirst=2, qg1=0, qun=1, pl=2, rowmap=1, er=0, bq=1, bo=1, nreg=0, r0=7, rstep=2, rpre=0, wil=0, pvx=-1, qs=9, dry=0, rot=0, init4=1, stag=0, k0=0, k1=7, k2=13, k3=19, v0=0, v1=7, v2=13, v3=19, deep=0, kw_at=24, rf=1, flg=1, tlbw=1, fstride=8, st_fl=0, sleep=1, fused=1, stamps=0, nt_kv=1, delay_kv=0, pf=1, pf_at=12, noread=0, nomfma=0, noprio=0, nokv=0, nt_pf=0, nt_ring=0, nt_x=0, m_pre=0, m_post=0, m_rate=100, wo_pos=24, wo_fl=0, wo_full=0, onoread=0, onomfma=0, onoload=0, nt_ringo=0)
for a in sys.argv[2:]:
    k, v = a.split("="); opts[k] = int(v)
L = []
def e(s): L.append("    " + s)
def lab(s): L.append(s + ":")
def c(s): L.append("    ; " + s)
def vr(a, n): return f"v[{a}:{a+n-1}]"

DEEP = opts['deep']
RING_Q = 0; NSQ = 8 if DEEP else 5; XR = 131072 if DEEP else 81920; KR = 65536 if DEEP else 98304; NXS = 4 if DEEP else 2; VR = 0; RING_O = 65536; NSO = 6; EX = 0
S_WAVE = 3
SX, SK, SV, SWQ, SWO, SWS, SDBG, SOUT = 32, 36, 40, 44, 48, 52, 56, 60
S_BR, S_B, S_HP, S_PAIR = 64, 65, 66, 67
S_T0, S_T1, S_T2, S_T3 = 68, 69, 70, 71
S_SLOT, S_CNT, S_SOFF, S_C = 72, 73, 74, 75
SB = 78
SFLG = 16
def srd(n): return f"s[{n}:{n+3}]"

class VM:
    def __init__(s): s.ops = []
    def add(s, tag):
        s.ops.append(tag)
        if len(s.ops) > 60: e("s_waitcnt vmcnt(59)"); s.ops = s.ops[-59:]
    def wait(s, tags):
        idx = max([i for i, t in enumerate(s.ops) if t in tags], default=-1)
        n = len(s.ops) - 1 - idx
        assert n <= 63
        if idx >= 0:
            e(f"s_waitcnt vmcnt({n})")
            s.ops = s.ops[idx+1:]

def stamp(i):
    if opts["stamps"]:
        e(f"s_memtime s[{78+2*i}:{79+2*i}]" if i else "s_memtime s[78:79]") if False else e(f"s_memtime s[{SB+2*i}:{SB+1+2*i}]")

def make_srd(n, plo, add_lo, nrec):
    e(f"s_add_u32 s{n}, s{plo}, s{add_lo}")
    e(f"s_addc_u32 s{n+1}, s{plo+1}, 0")
    e(f"s_and_b32 s{n+1}, s{n+1}, 0xffff")
    if isinstance(nrec, int): e(f"s_mov_b32 s{n+2}, {nrec}")
    else: e(f"s_mov_b32 s{n+2}, {nrec}")
    e(f"s_mov_b32 s{n+3}, 0x20000")

def decode_wg():
    e("s_and_b32 s68, s2, 7")
    e("s_lshr_b32 s69, s2, 3")
    e(f"s_lshr_b32 s{S_BR}, s68, 2")
    e(f"s_and_b32 s{S_PAIR}, s69, 1")
    e(f"s_lshr_b32 s{S_B}, s69, 1")
    e("s_and_b32 s68, s68, 3")
    e("s_lshl_b32 s68, s68, 1")
    e(f"s_add_u32 s{S_HP}, s68, s{S_PAIR}")

def rest_srds():
    e(f"s_lshl_b32 s68, s{S_B}, 19"); e(f"s_lshl_b32 s69, s{S_HP}, 16"); e("s_add_u32 s68, s68, s69")
    make_srd(SK, 6, 68, 65536); make_srd(SV, 8, 68, 65536)
    e(f"s_mul_i32 s68, s{S_HP}, 458752"); make_srd(SWO, 12, 68, 458752)
    e(f"s_lshl_b32 s68, s{S_BR}, 4"); e(f"s_add_u32 s68, s68, s{S_B}"); e("s_lshl_b32 s68, s68, 3")
    e(f"s_add_u32 s68, s68, s{S_HP}"); e("s_mul_i32 s68, s68, 57344"); make_srd(SWS, 28, 68, 57344)
    if opts["flg"]:
        fs = opts["fstride"]
        e(f"s_lshl_b32 s68, s{S_BR}, 4"); e(f"s_add_u32 s68, s68, s{S_B}"); e("s_lshl_b32 s68, s68, 3")
        make_srd(SDBG, 26, 68, 4)
        e(f"s_lshl_b32 s68, s68, {fs}"); e("s_add_u32 s68, s68, 0x4000000"); make_srd(SFLG, 28, 68, 8 << fs)

def main_kernel():
    lab(MK)
    e("s_cmp_ge_u32 s2, 256")
    e("s_cbranch_scc1 L_end")
    e("s_load_dwordx16 s[4:19], s[0:1], 0")
    e("s_load_dwordx8 s[20:27], s[0:1], 64")
    e("s_load_dwordx2 s[28:29], s[0:1], 96")
    stamp(0)
    e("v_lshrrev_b32 v1, 6, v0")
    e("v_and_b32 v0, 63, v0")
    e("s_nop 0")
    e(f"v_readfirstlane_b32 s{S_WAVE}, v1")
    decode_wg()
    e("s_waitcnt lgkmcnt(0)")
    e(f"s_cmp_eq_u32 s{S_BR}, 0")
    e("s_cselect_b64 s[4:5], s[4:5], s[14:15]")
    e("s_cselect_b64 s[6:7], s[6:7], s[16:17]")
    e("s_cselect_b64 s[8:9], s[8:9], s[18:19]")
    e("s_cselect_b64 s[10:11], s[10:11], s[20:21]")
    e("s_cselect_b64 s[12:13], s[12:13], s[22:23]")
    if opts["stamps"]: e("s_memrealtime s[14:15]")
    e(f"s_mul_i32 s68, s{S_B}, 57344"); make_srd(SX, 4, 68, 57344)
    e(f"s_lshl_b32 s68, s{S_HP}, 10"); e("s_sub_u32 s69, 3670016, s68"); make_srd(SWQ, 10, 68, "s69")
    e(f"s_cmp_lt_u32 s{S_WAVE}, 4"); e("s_cbranch_scc1 L_compute")
    loader()
    lab("L_compute")
    compute()
    lab("L_end")
    e("s_endpgm")

MF = "v_mfma_f32_32x32x16_bf16"
def compute():
    c("================= compute waves 0..3 =================")
    ACC = 0; AF = 128; XF = 192; AQB = 200; AQC = 204; AX = 208; AXT = 209; DUM = 210
    AK = 240; AV = 241; AO = 245; AOC = 246; AEW = 247; AER = 248; AST = 249; T0 = 250; T1 = 251; T2 = 252; T3 = 253; T4 = 254
    if not opts["noprio"]: e("s_setprio 1")
    rest_srds()
    S_HH, S_QH = 76, 77
    e(f"s_lshr_b32 s{S_HH}, s{S_WAVE}, 1"); e(f"s_and_b32 s{S_QH}, s{S_WAVE}, 1")
    c("lane decomposition: G=l>>4 r=(l>>2)&3 cc=l&3")
    e(f"v_bfe_u32 v1, v0, 2, 2")
    e(f"v_lshrrev_b32 v2, 5, v0")
    e(f"v_bfe_u32 v3, v0, 4, 1")
    e(f"v_and_b32 v4, 1, v0")
    e(f"v_bfe_u32 v5, v0, 1, 1")
    e(f"v_and_b32 v6, 31, v0")
    e("v_lshlrev_b32 v7, 13, v2"); e("v_lshl_add_u32 v7, v1, 10, v7")
    e("v_lshl_add_u32 v7, v3, 5, v7"); e("v_lshl_add_u32 v7, v4, 4, v7"); e("v_lshl_add_u32 v7, v5, 3, v7")
    e(f"s_lshl_b32 s68, s{S_HH}, 9"); e("v_add_u32 v7, s68, v7")
    for d in range(4):
        e(f"v_xor_b32 v8, {d}, v1"); e(f"v_lshl_add_u32 v{AQB+d}, v8, 6, v7")
    e("v_bfe_u32 v8, v0, 1, 3"); e("v_xor_b32 v8, v8, v2"); e("v_lshlrev_b32 v8, 4, v8"); e("v_lshl_add_u32 v8, v6, 7, v8")
    e(f"s_lshl_b32 s68, s{S_QH}, 12"); e(f"s_add_u32 s68, s68, {XR}"); e(f"v_add_u32 v{AX}, s68, v8")
    e("v_and_b32 v8, 15, v0"); e("v_xor_b32 v8, v8, v2"); e("v_lshlrev_b32 v8, 4, v8"); e("v_lshl_add_u32 v8, v6, 9, v8")
    e(f"s_lshl_b32 s69, s{S_HH}, 15"); e(f"s_add_u32 s68, s69, {KR}"); e(f"v_add_u32 v{AK}, s68, v8")
    e("v_lshlrev_b32 v7, 11, v2"); e("v_lshl_add_u32 v7, v1, 9, v7"); e("v_lshl_add_u32 v7, v3, 5, v7")
    e("v_and_b32 v8, 3, v0"); e("v_lshl_add_u32 v7, v8, 3, v7"); e("v_add_u32 v7, s69, v7")
    for d in range(4):
        e(f"v_xor_b32 v8, {d}, v1"); e(f"v_lshl_add_u32 v{AV+d}, v8, 6, v7")
    e("v_lshl_add_u32 v7, v2, 2, v1"); e("v_lshlrev_b32 v7, 7, v7")
    e("v_lshl_add_u32 v7, v4, 5, v7"); e("v_lshl_add_u32 v7, v3, 4, v7"); e("v_lshl_add_u32 v7, v5, 3, v7")
    e("v_lshrrev_b32 v8, 1, v1"); e(f"v_xor_b32 v8, s{S_HH}, v8"); e(f"v_lshl_add_u32 v{AO}, v8, 6, v7")
    e("v_lshlrev_b32 v7, 4, v0")
    e(f"s_lshl_b32 s68, s{S_QH}, 14"); e(f"s_lshl_b32 s69, s{S_HH}, 15")
    e(f"s_sub_u32 s70, 65536, s69"); e("s_add_u32 s70, s70, s68"); e(f"v_add_u32 v{AEW}, s70, v7")
    e(f"s_add_u32 s70, 32768, s69"); e("s_add_u32 s70, s70, s68"); e(f"v_add_u32 v{AER}, s70, v7")
    e(f"s_mul_i32 s68, s{S_QH}, 14"); e(f"s_add_u32 s68, s68, s{S_HH}"); e("s_lshl_b32 s68, s68, 11")
    e(f"v_add_u32 v{AST}, s68, v7")
    e(f"s_cmp_eq_u32 s{S_HH}, 0"); e("s_cselect_b64 s[8:9], -1, 0")
    if opts["flg"]:
        c("wave 0: reset this workgroup's hand-off line in ws")
        e(f"s_cmp_lg_u32 s{S_WAVE}, 0"); e("s_cbranch_scc1 L_noreset")
        e(f"s_lshl_b32 s68, s{S_HP}, {opts['fstride']}")
        e(f"v_lshlrev_b32 v8, {2 if opts['er'] else opts['pl']}, v0"); e("v_mov_b32 v9, 0")
        if not opts["er"]: e("s_mov_b64 exec, 0xff")
        e(f"buffer_store_dword v9, v8, {srd(SFLG)}, s68 offen sc1")
        e("s_mov_b64 exec, -1")
        lab("L_noreset")
    if opts["tlbw"]:
        c("wave 1: touch the partial slab / output pages (address translation warm-up; values unused)")
        e(f"s_cmp_lg_u32 s{S_WAVE}, 1"); e("s_cbranch_scc1 L_notlb")
        e(f"s_mul_i32 s68, s{S_B}, 114688"); make_srd(SOUT, 24, 68, 57344)
        e("v_mov_b32 v9, 0")
        e(f"buffer_load_dword v{T3}, v9, {srd(SWS)}, 0 offen sc1")
        e(f"buffer_load_dword v{T4}, v9, {srd(SOUT)}, 0 offen sc1")
        lab("L_notlb")
    e("s_mov_b32 s11, 0")
    if opts["dry"]:
        c("instruction-cache warm-up: run the attention section once with all lanes off")
        e("s_mov_b32 s11, 1"); e("s_mov_b64 exec, 0"); e("s_branch L_S")
        lab("L_dryret")
        e("s_mov_b32 s11, 0"); e("s_mov_b64 exec, -1")
    c("zero Q accumulators")
    if not opts["qun"]:
        for i in range(128): e(f"v_mov_b32 v{i}, 0")
    def q_reads(buf, piece):
        r = [f"ds_read_b128 {vr(XF+4*buf,4)}, v{AXT}"]
        for dt in range(8):
            for u in range(2):
                r.append(f"ds_read_b64_tr_b16 {vr(AF+32*buf+4*dt+2*u,2)}, v{AQC+(dt&3)} offset:{u*4096+(dt>>2)*256}")
        return r
    if opts["qun"]:
        AXP = 212
        for d in range(4): e(f"v_add_u32 v{AQC+d}, 0x10000, v{AQB+d}")
        for p in range(4): e(f"v_xor_b32 v{AXP+p}, {p<<5}, v{AX}")
        def q_rd(t):
            buf = t & 1; sl = (t % NSQ) * 16384
            r = [f"ds_read_b128 {vr(XF+4*buf,4)}, v{AXP+(t&3)} offset:{((t//4) % NXS)*8192}"]
            for dt in range(8):
                for u in range(2):
                    r.append(f"ds_read_b64_tr_b16 {vr(AF+32*buf+4*dt+2*u,2)}, v{(AQC if sl >= 65536 else AQB)+(dt&3)} offset:{(sl & 65535)+u*4096+(dt>>2)*256}")
            return r
        stamp(1)
        e("s_barrier ; B0")
        stamp(2)
        for r in q_rd(0): e(r)
        for t in range(28):
            cur = t & 1
            m = [f"{MF} {vr(16*dt,16)}, {vr(AF+32*cur+4*dt,4)}, {vr(XF+4*cur,4)}, {vr(16*dt,16) if t else 0}" for dt in range(8)]
            rd = q_rd(t+1) if t < 27 else []
            e("s_waitcnt lgkmcnt(14)")
            e(m[0])
            e("s_waitcnt lgkmcnt(0)")
            if opts["bq"] == 1 or t & 1: e(f"s_barrier ; B{t+1}")
            for j in range(1, 8):
                for _ in range(opts["qg1"] if j == 1 else 3):
                    if rd: e(rd.pop(0))
                e(m[j])
            assert not rd
    else:
        e(f"s_mov_b32 s{S_SLOT}, 0")
        for d in range(4): e(f"v_mov_b32 v{AQC+d}, v{AQB+d}")
        e(f"v_mov_b32 v{AXT}, v{AX}")
        stamp(1)
        e("s_barrier ; B0")
        stamp(2)
        for r in q_reads(0, 0): e(r)
        def q_upd(p):
            e(f"s_add_u32 s{S_SLOT}, s{S_SLOT}, 16384"); e(f"s_cmp_eq_u32 s{S_SLOT}, {NSQ*16384}"); e(f"s_cselect_b32 s{S_SLOT}, 0, s{S_SLOT}")
            if p % 4 == 3:
                if DEEP: e(f"v_add_u32 v{AX}, 0x2000, v{AX}"); e(f"v_and_b32 v{AX}, 0x27fff, v{AX}")
                else: e(f"v_xor_b32 v{AX}, 0x2000, v{AX}")
            e(f"v_xor_b32 v{AXT}, {((p+1)&3)<<5}, v{AX}")
            for d in range(4): e(f"v_add_u32 v{AQC+d}, s{S_SLOT}, v{AQB+d}")
        q_upd(0)
        e(f"s_mov_b32 s{S_CNT}, 7")
        lab("L_qloop")
        for p in range(4):
            cur = p & 1; nxt = cur ^ 1
            m = [f"{MF} {vr(16*dt,16)}, {vr(AF+32*cur+4*dt,4)}, {vr(XF+4*cur,4)}, {vr(16*dt,16)}" for dt in range(8)]
            rd = q_reads(nxt, (p+1) & 3)
            e("s_waitcnt lgkmcnt(14)")
            e(m[0])
            e("s_waitcnt lgkmcnt(0)")
            if opts["bq"] == 1 or p & 1: e("s_barrier")
            k = 0
            if opts["noread"]: rd = []
            for j in range(1, 8):
                for _ in range(3 if j > 1 else 1):
                    if k < len(rd): e(rd[k]); k += 1
                if j == 7: q_upd(p + 1)
                if not opts["nomfma"]: e(m[j])
            assert k == len(rd)
        e(f"s_sub_u32 s{S_CNT}, s{S_CNT}, 1"); e(f"s_cmp_lg_u32 s{S_CNT}, 0"); e("s_cbranch_scc1 L_qloop")
    stamp(3)
    if opts["flg"] or opts["tlbw"]: e("s_waitcnt vmcnt(0)")
    if opts["flg"]:
        e(f"s_cmp_lg_u32 s{S_WAVE}, 0"); e("s_cbranch_scc1 L_nocnt")
        e(f"v_mov_b32 v{T3}, 0"); e(f"v_mov_b32 v{T4}, 1")
        e("s_mov_b64 exec, 1")
        e(f"buffer_atomic_add v{T4}, v{T3}, {srd(SDBG)}, 0 offen sc1")
        e("s_mov_b64 exec, -1")
        lab("L_nocnt")
    lab("L_S")
    c("---- S^T = K Q^T")
    QP = 128; KF = 192; SA = 208
    e("s_waitcnt lgkmcnt(0)")
    def kslot(n): return (KF + 4*(n&7)) if (n&7) < 4 else 4*((n&7)-4)
    def k_read(n):
        x = n >> 1; kt = n & 1
        return f"ds_read_b128 {vr(kslot(n),4)}, v{T0+(x&1)} offset:{kt*16384+(x>>3)*256}"
    def k_addr(x): return f"v_xor_b32 v{T0+(x&1)}, {(x&7)<<5}, v{AK}"
    def cvt_tile(src, dst):
        return [f"v_cvt_pk_bf16_f32 v{dst+i}, v{src+2*i}, v{src+2*i+1}" for i in range(8)]
    for n in range(4):
        if n % 2 == 0: e(k_addr(n >> 1))
        e(k_read(n))
    for x in cvt_tile(0, QP): e(x)
    for n in range(4, 8):
        if n % 2 == 0: e(k_addr(n >> 1))
        e(k_read(n))
    cv = [x for dt in range(1, 8) for x in cvt_tile(16*dt, QP+8*dt)]
    for n in range(32):
        dt = n >> 2; s_ = (n >> 1) & 1; kt = n & 1
        if n % 2 == 0: e(f"s_waitcnt lgkmcnt({min(6, 30-n)})")
        cin = "0" if n < 2 else vr(SA+16*kt, 16)
        e(f"{MF} {vr(SA+16*kt,16)}, {vr(kslot(n),4)}, {vr(QP+8*dt+4*s_,4)}, {cin}")
        if n >= 1:
            for _ in range(2):
                if cv: e(cv.pop(0))
        if n + 8 < 32:
            if n % 2 == 0: e(k_addr((n+8) >> 1))
            e(k_read(n+8))
    stamp(4)
    c("---- softmax over keys (32 in-lane values + partner half)")
    PP = 192
    e("s_nop 7"); e("s_nop 3")
    e(f"v_max3_f32 v{T0}, v{SA}, v{SA+1}, v{SA+2}")
    e(f"v_max3_f32 v{T1}, v{SA+16}, v{SA+17}, v{SA+18}")
    for i in range(3, 15, 2):
        e(f"v_max3_f32 v{T0}, v{T0}, v{SA+i}, v{SA+i+1}")
        e(f"v_max3_f32 v{T1}, v{T1}, v{SA+16+i}, v{SA+16+i+1}")
    e(f"v_max3_f32 v{T0}, v{T0}, v{SA+15}, v{SA+31}")
    e(f"v_max_f32 v{T0}, v{T0}, v{T1}")
    e(f"v_mov_b32 v{T1}, v{T0}"); e("s_nop 1")
    e(f"v_permlane32_swap_b32 v{T0}, v{T1}"); e("s_nop 1")
    e(f"v_max_f32 v{T0}, v{T0}, v{T1}")
    e("s_mov_b32 s12, 0x3db8aa3b ; 0.0625*log2(e)")
    e(f"v_mul_f32 v{T0}, s12, v{T0}")
    for i in range(0, 32, 2):
        e(f"v_pk_fma_f32 {vr(SA+i,2)}, {vr(SA+i,2)}, s[12:13], {vr(T0,2)} op_sel_hi:[1,0,0] neg_lo:[0,0,1] neg_hi:[0,0,1]")
        if i >= 2: e(f"v_exp_f32 v{SA+i-2}, v{SA+i-2}"); e(f"v_exp_f32 v{SA+i-1}, v{SA+i-1}")
        if i == 6: e(f"v_pk_add_f32 {vr(T2,2)}, {vr(SA,2)}, {vr(SA+2,2)}")
        if i > 6: e(f"v_pk_add_f32 {vr(T2,2)}, {vr(T2,2)}, {vr(SA+i-4,2)}")
    e(f"v_exp_f32 v{SA+30}, v{SA+30}"); e(f"v_exp_f32 v{SA+31}, v{SA+31}")
    e(f"v_pk_add_f32 {vr(T2,2)}, {vr(T2,2)}, {vr(SA+28,2)}"); e("s_nop 0")
    e(f"v_pk_add_f32 {vr(T2,2)}, {vr(T2,2)}, {vr(SA+30,2)}")
    e(f"v_add_f32 v{T0}, v{T2}, v{T3}")
    e(f"v_mov_b32 v{T1}, v{T0}"); e("s_nop 1")
    e(f"v_permlane32_swap_b32 v{T0}, v{T1}"); e("s_nop 1")
    e(f"v_add_f32 v{T0}, v{T0}, v{T1}")
    e(f"v_rcp_f32 v{T0}, v{T0}"); e("s_nop 0")
    for i in range(16):
        e(f"v_pk_mul_f32 {vr(SA+2*i,2)}, {vr(SA+2*i,2)}, {vr(T0,2)} op_sel_hi:[1,0]")
        if i: e(f"v_cvt_pk_bf16_f32 v{PP+i-1}, v{SA+2*i-2}, v{SA+2*i-1}")
    e(f"v_cvt_pk_bf16_f32 v{PP+15}, v{SA+30}, v{SA+31}")
    stamp(5)
    if opts["dry"]: e("s_cmp_eq_u32 s11, 1"); e("s_cbranch_scc1 L_nob29")
    e("s_barrier")
    lab("L_nob29")
    stamp(6)
    c("---- O^T = V^T P^T")
    VF = 208; OP = 128
    seq = [(2*dp+o, ks) for dp in range(4) for ks in range(4) for o in range(2)]
    def v_reads(n):
        dt, ks = seq[n]
        return [f"ds_read_b64_tr_b16 {vr(VF+4*(n&7)+2*u,2)}, v{AV+(dt&3)} offset:{(dt>>2)*256+(16*ks+8*u)*512}" for u in range(2)]
    PFD = 7
    for n in range(PFD):
        for r in v_reads(n): e(r)
    e(f"s_cmp_eq_u32 s{S_HH}, 0"); e("s_cbranch_scc0 L_pv1")
    for hh in range(2):
        if hh: lab("L_pv1")
        lg = []
        for n in range(PFD): lg += [n, n]
        def ex_write(dt):
            if hh: return
            e(f"ds_write_b128 v{AEW}, {vr(OP+8*dt,4)} offset:{2*dt*1024}"); e(f"ds_write_b128 v{AEW}, {vr(OP+8*dt+4,4)} offset:{(2*dt+1)*1024}")
            lg.extend(["w", "w"])
        for n, (dt, ks) in enumerate(seq):
            idx = max(i for i, t in enumerate(lg) if t == n); cnt = len(lg) - 1 - idx
            if opts["pvx"] < 2: e(f"s_waitcnt lgkmcnt({min(cnt,15)})")
            del lg[:idx+1]
            cin = "0" if ks == 0 else vr(16*dt, 16)
            e(f"{MF} {vr(16*dt,16)}, {vr(VF+4*(n&7),4)}, {vr(PP+4*ks,4)}, {cin}")
            if n + PFD < len(seq):
                for r in v_reads(n+PFD):
                    if opts["pvx"] < 2: e(r)
                    lg.append(n+PFD)
            if n >= 8 and opts["pvx"] in (0, -1):
                tl = 2*(n >> 3) - 2 + ((n >> 2) & 1)
                cv = cvt_tile(16*tl, OP+8*tl); e(cv[2*(n&3)]); e(cv[2*(n&3)+1])
                if n % 4 == 0 and tl >= 1 and opts["pvx"] == 0: ex_write(tl-1)
        if opts["pvx"] == -1:
            for tl in range(5): ex_write(tl)
        ex_write(5)
        e("s_nop 3")
        for x in cvt_tile(16*6, OP+48): e(x)
        ex_write(6)
        e("s_nop 3")
        for x in cvt_tile(16*7, OP+56): e(x)
        ex_write(7)
        if hh == 0: e("s_branch L_pvdone")
    lab("L_pvdone")
    e("s_waitcnt lgkmcnt(0)")
    if opts["dry"]: e("s_cmp_eq_u32 s11, 1"); e("s_cbranch_scc1 L_dryret")
    stamp(7)
    e("s_barrier")
    c("---- out projection: 7 passes of one 128-byte column block, K=512")
    PAR = 0; ACA = 64; ACB = 96; ACQ = 80
    sc = [" sc1", " sc0 sc1", " nt sc1", ""][opts["st_fl"]]
    S_ST = 10
    def o_rd(j, buf):
        return [f"ds_read_b64_tr_b16 {vr(buf+4*j+2*u,2)}, v{AOC} offset:{j*2048+u*1024}" for u in range(2)]
    def store_tile(acc):
        adds = [f"v_pk_add_f32 {vr(acc+2*i,2)}, {vr(acc+2*i,2)}, {vr(ACQ+2*i,2)}" for i in range(8)] if opts["qs"] == 3 else [f"v_add_f32 v{acc+i}, v{acc+i}, v{ACQ+i}" for i in range(16)]
        if opts["qs"] > 31: adds = []
        return adds + cvt_tile(acc, acc) + [
                                    f"buffer_store_dwordx4 {vr(acc,4)}, v{AST}, {srd(SWS)}, s{S_ST} offen{sc}",
                                    f"buffer_store_dwordx4 {vr(acc+4,4)}, v{AST}, {srd(SWS)}, s{S_ST} offen offset:1024{sc}",
                                    f"s_add_u32 s{S_ST}, s{S_ST}, 4096"] + ([f"s_cmp_eq_u32 s{S_ST}, {7*4096}", f"s_cselect_b32 s{S_ST}, 0, s{S_ST}"] if opts["rot"] else [])
    WF = [192, 16*7]
    def wf(buf, j):
        if buf == 0: return 192 + 4*j
        return 112 + 4*j if j < 4 else 224 + 4*(j-4)
    def o_reads(buf):
        return [f"ds_read_b64_tr_b16 {vr(wf(buf,j)+2*u,2)}, v{AOC} offset:{j*2048+u*1024}" for j in range(8) for u in range(2)]
    def o_upd(part=3):
        if opts["od"]:
            if part & 1:
                e(f"s_add_u32 s13, s{S_SLOT}, 16384"); e(f"s_cmp_eq_u32 s13, 163840"); e(f"s_cselect_b32 s{S_SLOT}, 0, s13")
                e(f"s_cmp_eq_u32 s13, 32768"); e(f"s_cselect_b32 s{S_SLOT}, 65536, s{S_SLOT}")
            if part & 2:
                e(f"s_cmp_eq_u32 s13, 98304"); e(f"s_cselect_b32 s{S_SLOT}, 32768, s{S_SLOT}")
                e(f"s_cmp_eq_u32 s13, 65536"); e(f"s_cselect_b32 s{S_SLOT}, 98304, s{S_SLOT}")
                e(f"v_add_u32 v{AOC}, s{S_SLOT}, v{AO}")
            return
        if not part & 1: return
        e(f"s_add_u32 s{S_SLOT}, s{S_SLOT}, 16384"); e(f"s_cmp_eq_u32 s{S_SLOT}, 163840"); e(f"s_cselect_b32 s{S_SLOT}, 0, s{S_SLOT}")
        e(f"s_cmp_eq_u32 s{S_SLOT}, 32768"); e(f"s_cselect_b32 s{S_SLOT}, 98304, s{S_SLOT}")
        e(f"v_add_u32 v{AOC}, s{S_SLOT}, v{AO}")
    def o_pass(hh, acc, prev, first):
        for st in range(4):
            cur = st & 1
            if st == 0: extra = store_tile(prev) if prev is not None else []
            exr = []
            if first and hh == 0 and st in (1,):
                exr = [f"ds_read_b128 {vr(PAR+4*i,4)}, v{AER} offset:{i*1024}" for i in range(16)]
            if first and hh == 1 and st == 0 and opts["wil"]:
                exr = [f"ds_write_b128 v{AEW}, {vr(OP+4*i,4)} offset:{i*1024}" for i in range(16)]
            rd = o_reads(cur ^ 1) if not opts['onoread'] else []
            for j in range(8):
                kk = 8*st + j
                b = (OP if (kk >> 4) == hh else PAR) + 4*(kk & 15)
                ac = ACQ if (kk & 1 and kk >= opts["qs"]) else acc
                cin = "0" if kk in (0, opts["qs"]) else vr(ac, 16)
                if j == 0: e("s_waitcnt lgkmcnt(14)")
                e(f"{MF} {vr(ac,16)}, {vr(wf(cur,j),4)}, {vr(b,4)}, {cin}")
                if j == 0:
                    e("s_waitcnt lgkmcnt(0)")
                    if opts["bo"] == 1 or st & 1: e("s_barrier")
                if j < 7:
                    for _ in range(3 if (j % 3) != 2 else 2):
                        if exr: e(exr.pop(0))
                    for _ in range(1 if j == 0 else 3):
                        if rd: e(rd.pop(0))
                if j == 6: o_upd(1)
                if j == 7: o_upd(2)
                if kk >= 1:
                    for _ in range((4 if j < 3 else 3) if opts["qs"] == 3 else 2):
                        if extra: e(extra.pop(0))
            assert not rd and not exr and (st < 2 or not extra), (rd, extra, exr)
    e(f"s_mov_b32 s{S_SLOT}, 98304"); e(f"v_add_u32 v{AOC}, s{S_SLOT}, v{AO}")
    e(f"s_mov_b32 s{S_ST}, 0"); e(f"s_mov_b32 s{S_CNT}, 3")
    if opts["er"]:
        e(f"v_mbcnt_lo_u32_b32 v{T0}, -1, 0"); e(f"v_lshlrev_b32 v{T0}, 8, v{T0}"); e(f"v_mov_b32 v{T1}, 1")
        e(f"s_lshl_b32 s12, s{S_HP}, 2"); e(f"s_add_u32 s12, s12, s{S_WAVE}"); e("s_lshl_b32 s12, s12, 2")
    if opts["rot"]:
        e(f"s_mul_i32 s6, s{S_B}, 37"); e("s_lshr_b32 s6, s6, 8"); e("s_mul_i32 s6, s6, 7"); e(f"s_sub_u32 s6, s{S_B}, s6"); e(f"s_lshl_b32 s{S_ST}, s6, 12")
    e(f"s_cmp_eq_u32 s{S_HH}, 0"); e("s_cbranch_scc0 L_oh1")
    for hh in range(2):
        if hh == 1:
            lab("L_oh1")
            for i in range(8): e(f"ds_read_b128 {vr(PAR+4*i,4)}, v{AER} offset:{i*1024}")
        for r in o_reads(0): e(r)
        o_upd()
        if hh == 1:
            for i in range(8, 16): e(f"ds_read_b128 {vr(PAR+4*i,4)}, v{AER} offset:{i*1024}")
            if not opts["wil"]:
                for i in range(16): e(f"ds_write_b128 v{AEW}, {vr(OP+4*i,4)} offset:{i*1024}")
                e("s_waitcnt lgkmcnt(15)")
        o_pass(hh, ACA, None, True)
        lab(f"L_oloop{hh}")
        o_pass(hh, ACB, ACA, False)
        if opts["er"] == 1:
            c("last trip: passes 0..3 of this wave are at the coherence point -> hand-off flag A")
            e(f"s_cmp_lg_u32 s{S_CNT}, 1"); e(f"s_cbranch_scc1 L_noA{hh}")
            e("s_waitcnt vmcnt(2)"); e("s_mov_b64 exec, 0xff")
            e(f"buffer_store_dword v{T1}, v{T0}, {srd(SFLG)}, s12 offen sc1")
            e("s_mov_b64 exec, -1")
            lab(f"L_noA{hh}")
        o_pass(hh, ACA, ACB, False)
        e(f"s_sub_u32 s{S_CNT}, s{S_CNT}, 1"); e(f"s_cmp_lg_u32 s{S_CNT}, 0"); e(f"s_cbranch_scc1 L_oloop{hh}")
        if hh == 0: e("s_branch L_odone")
    lab("L_odone")
    stamp(8)
    e("s_nop 7"); e("s_nop 3")
    for x in store_tile(ACA): e(x)
    if opts["fused"]:
        e("s_waitcnt vmcnt(0)")
        stamp(9)
        if opts["er"]:
            e("s_mov_b64 exec, 0xff")
            e(f"buffer_store_dword v{T1}, v{T0}, {srd(SFLG)}, s12 offen offset:128 sc1")
            e("s_mov_b64 exec, -1")
            if opts["er"] == 1:
                e(f"s_cmp_eq_u32 s{S_WAVE}, 3"); e("s_cbranch_scc1 L_end")
                e(f"s_add_u32 s12, s{S_WAVE}, 4")
            else: e(f"s_mov_b32 s12, s{S_WAVE}")
            e("s_movk_i32 s13, 128")
            tail2()
        else: tail()
    else:
        dump_stamps(10)
        e("s_endpgm")

def dump_stamps(n):
    if opts["stamps"]:
        e(f"s_cmp_lg_u32 s{S_WAVE}, 0"); e("s_cbranch_scc1 L_end")
        e("s_waitcnt vmcnt(0)")
        stamp(n-1)
        e("s_waitcnt lgkmcnt(0)")
        e("s_memrealtime s[6:7]")
        e("s_lshl_b32 s68, s2, 6"); e("s_add_u32 s68, s68, 0x8000000"); make_srd(SDBG, 28, 68, 64)
        e("v_mov_b32 v1, 0")
        e("s_getreg_b32 s68, hwreg(HW_REG_XCC_ID)"); e("v_mov_b32 v2, s68"); e(f"buffer_store_dword v2, v1, {srd(SDBG)}, 0 offen offset:56")
        e("s_waitcnt lgkmcnt(0)")
        e("v_mov_b32 v2, s14"); e(f"buffer_store_dword v2, v1, {srd(SDBG)}, 0 offen offset:0")
        e("v_mov_b32 v2, s6"); e(f"buffer_store_dword v2, v1, {srd(SDBG)}, 0 offen offset:60")
        for i in range(1, n):
            e(f"s_sub_u32 s68, s{SB+2*i}, s{SB}"); e("v_mov_b32 v2, s68")
            e(f"buffer_store_dword v2, v1, {srd(SDBG)}, 0 offen offset:{4*i}")

def tail():
    lab("L_tail")
    c("================= cross-workgroup reduction =================")
    e("s_barrier")
    e("v_mbcnt_lo_u32_b32 v0, -1, 0"); e("v_mbcnt_hi_u32_b32 v0, -1, v0")
    if not opts["rowmap"]: e(f"s_lshl_b32 s64, s{S_BR}, 4"); e(f"s_add_u32 s64, s64, s{S_B}")
    e(f"s_cmp_lg_u32 s{S_WAVE}, 7"); e("s_cbranch_scc1 L_nopoll")
    if opts["flg"]:
        e("s_mov_b64 exec, 0xff")
        e(f"buffer_store_dword v2, v4, {srd(SFLG)}, 0 offen sc1")
        e(f"s_mov_b32 s{S_CNT}, 0x40000")
        lab("L_poll")
        e(f"buffer_load_dword v3, v1, {srd(SFLG)}, 0 offen sc1")
        e("s_waitcnt vmcnt(0)")
        e("v_cmp_eq_u32 vcc, 1, v3")
        e("s_cmp_eq_u32 vcc_lo, 0xff"); e("s_cbranch_scc1 L_polled")
        if opts["sleep"]: e(f"s_sleep {opts['sleep']}")
        e(f"s_sub_u32 s{S_CNT}, s{S_CNT}, 1"); e(f"s_cmp_lg_u32 s{S_CNT}, 0"); e("s_cbranch_scc1 L_poll")
    else:
        e("s_lshl_b32 s68, s64, 3"); make_srd(SDBG, 26, 68, 4)
        e("v_mov_b32 v1, 0"); e("v_mov_b32 v2, 1")
        e("s_mov_b64 exec, 1")
        e(f"buffer_atomic_add v2, v1, {srd(SDBG)}, 0 offen sc1")
        e(f"s_mov_b32 s{S_CNT}, 0x40000")
        lab("L_poll")
        e(f"buffer_load_dword v3, v1, {srd(SDBG)}, 0 offen sc1")
        e("s_waitcnt vmcnt(0)")
        e("v_readfirstlane_b32 s68, v3")
        e("s_cmp_ge_u32 s68, 8"); e("s_cbranch_scc1 L_polled")
        e(f"s_sleep {opts['sleep']}")
        e(f"s_sub_u32 s{S_CNT}, s{S_CNT}, 1"); e(f"s_cmp_lg_u32 s{S_CNT}, 0"); e("s_cbranch_scc1 L_poll")
    lab("L_polled")
    e("s_mov_b64 exec, -1")
    e("s_barrier")
    e("s_endpgm")
    lab("L_nopoll")
    if opts["rowmap"]: e(f"s_mov_b32 s12, s{S_WAVE}"); reduce_setup2()
    else:
        e(f"s_mul_i32 s66, s{S_HP}, 7"); e(f"s_add_u32 s66, s66, s{S_WAVE}")
        reduce_setup()
    e("s_barrier")
    stamp(10)
    reduce_body(" sc1")
    dump_stamps(12)
    e("s_endpgm")

def reduce_setup2():
    e(f"s_lshl_b32 s68, s{S_BR}, 4"); e(f"s_add_u32 s68, s68, s{S_B}")
    e("s_mul_i32 s68, s68, 458752"); make_srd(SWS, 28, 68, 458752)
    e("s_mov_b32 s68, 0"); make_srd(SOUT, 24, 68, 1835008)
    e("v_lshrrev_b32 v2, 4, v0"); e("v_bfe_u32 v3, v0, 3, 1"); e("v_and_b32 v4, 7, v0")
    e("v_lshlrev_b32 v1, 10, v2"); e("v_lshl_add_u32 v1, v3, 9, v1"); e("v_lshl_add_u32 v1, v4, 4, v1")
    e(f"s_lshr_b32 s69, s{S_HP}, 2"); e("s_mul_i32 s69, s69, 28672"); e(f"s_and_b32 s70, s{S_HP}, 3"); e("s_lshl_b32 s70, s70, 7")
    e("s_lshl_b32 s68, s12, 12"); e("s_add_u32 s68, s68, s69"); e("s_add_u32 s68, s68, s70")
    e("v_mul_u32_u24 v4, 1792, v4"); e("v_lshl_add_u32 v4, v3, 5, v4"); e("v_lshrrev_b32 v3, 1, v2"); e("v_lshl_add_u32 v4, v3, 6, v4")
    e("v_and_b32 v3, 1, v2"); e("v_lshl_add_u32 v2, v3, 4, v4")
    e(f"s_lshl_b32 s72, s{S_B}, 3"); e(f"s_add_u32 s72, s72, s{S_HP}"); e("s_mul_i32 s72, s72, 14336")
    e(f"s_mul_i32 s69, s{S_BR}, 896"); e("s_add_u32 s72, s72, s69"); e("s_lshl_b32 s69, s12, 7"); e("s_add_u32 s72, s72, s69")

def tail2():
    lab("L_tail2")
    c("================= cross-workgroup reduction: rows 8*hp..8*hp+7 of the group's tile, block s12 =================")
    e("v_mbcnt_lo_u32_b32 v0, -1, 0"); e("v_mbcnt_hi_u32_b32 v0, -1, v0")
    e(f"s_lshl_b32 s68, s{S_HP}, 8"); e("s_add_u32 s13, s13, s68")
    e("v_and_b32 v6, 31, v0"); e("v_lshlrev_b32 v6, 2, v6")
    e(f"buffer_load_dword v7, v6, {srd(SFLG)}, s13 offen sc1")
    reduce_setup2()
    e(f"s_mov_b32 s{S_CNT}, 0x40000")
    lab("L_poll2")
    e("s_waitcnt vmcnt(0)")
    e("v_cmp_ne_u32 vcc, 1, v7")
    e("s_cbranch_vccz L_polled2")
    if opts["sleep"]: e(f"s_sleep {opts['sleep']}")
    e(f"buffer_load_dword v7, v6, {srd(SFLG)}, s13 offen sc1")
    e(f"s_sub_u32 s{S_CNT}, s{S_CNT}, 1"); e(f"s_cmp_lg_u32 s{S_CNT}, 0"); e("s_cbranch_scc1 L_poll2")
    lab("L_polled2")
    stamp(10)
    reduce_body(" sc1")
    dump_stamps(12)
    e("s_endpgm")

def loader():
    lab("L_loader")
    c("================= loader waves 4..7 =================")
    S_LW = 76
    VQ, VX, VO, VK, VL, VW, VPF, DUM, VD = 8, 12, 16, 20, 28, 29, 32, 36, 64
    ntk = ["", " nt", " sc1", " sc0 sc1", " sc1 nt", " sc0 sc1 nt", " sc0", " sc0 nt"][opts["nt_kv"]]; ntp = " nt" if opts["nt_pf"] else ""; ntr = " nt" if opts["nt_ring"] else ""
    ntx = " nt" if opts["nt_x"] else ""
    vm = VM()
    e(f"s_sub_u32 s{S_LW}, s{S_WAVE}, 4")
    def q_pf(t):
        ws = [w for w in range(4) if ([-1, opts["pq1"], opts["pq2"], opts["pq3"]][w] == t)]
        if not ws or not (opts["pfq"] & 1): return
        if len(ws) < 4:
            e(f"s_lshl_b32 s68, 1, s{S_LW}"); e(f"s_and_b32 s68, s68, {sum(1 << w for w in ws)}"); e("s_cselect_b64 exec, -1, 0")
        e(f"buffer_load_dword v{DUM}, v{VPF}, {srd(SWQ)}, s7 offen{ntp}"); vm.add("pf")
        if len(ws) < 4: e("s_mov_b64 exec, -1")
    def do_pf():
        c("L2 line prefetch: Wq row (16t+b), x half")
        e("v_lshrrev_b32 v1, 3, v0"); e("v_and_b32 v2, 7, v0"); e("v_lshlrev_b32 v2, 7, v2"); e(f"v_lshl_add_u32 v{VPF}, v1, 17, v2")
        e(f"s_lshl_b32 s68, s{S_LW}, 20"); e(f"s_lshl_b32 s69, s{S_B}, 13"); e("s_add_u32 s68, s68, s69")
        e("s_mov_b32 s7, s68")
        q_pf(-1)
        e("v_and_b32 v1, 31, v0"); e("v_mul_u32_u24 v1, 896, v1"); e("v_lshrrev_b32 v2, 5, v0"); e(f"v_lshl_add_u32 v{VPF+1}, v2, 7, v1")
        e(f"s_mul_i32 s68, s{S_PAIR}, 28672"); e(f"s_lshl_b32 s69, s{S_LW}, 8"); e("s_add_u32 s68, s68, s69")
        if opts["pfq"] & 2: e(f"buffer_load_dword v{DUM}, v{VPF+1}, {srd(SX)}, s68 offen{ntx}"); vm.add("pf")
    if not opts['rf']: do_pf()
    c("K dma patterns")
    S_KV = 77
    def k_setup():
        rest_srds()
        e("v_lshrrev_b32 v1, 5, v0"); e("v_and_b32 v2, 31, v0"); e("v_xor_b32 v3, v2, v1"); e("v_lshlrev_b32 v3, 4, v3")
        e("v_lshl_add_u32 v3, v1, 9, v3")
        for n in range(8): e(f"v_xor_b32 v{VK+n}, {(2*n)<<4}, v3")
        e(f"s_lshl_b32 s{S_KV}, s{S_LW}, 14")
        e(f"v_lshlrev_b32 v{VL}, 4, v0")
    KD = 128
    def k_load(n):
        if DEEP:
            e(f"s_add_u32 s{S_SOFF}, s{S_KV}, {n*1024}")
            e(f"buffer_load_dwordx4 {vr(KD+4*n,4)}, v{VK+n%8}, {srd(SK)}, s{S_SOFF} offen{ntk}"); vm.add(("k", n)); return
        e(f"s_add_u32 s{S_SOFF}, s{S_KV}, {n*1024}"); e(f"s_add_u32 m0, s{S_SOFF}, {KR}"); e("s_nop 0")
        e(f"buffer_load_dwordx4 v{VK+n%8}, {srd(SK)}, s{S_SOFF} offen{ntk} lds"); vm.add("k")
    def v_load(n):
        e(f"s_add_u32 s{S_SOFF}, s{S_KV}, {(n&~3)*1024}")
        e(f"buffer_load_dwordx4 {vr(VD+4*n,4)}, v{VL}, {srd(SV)}, s{S_SOFF} offen offset:{(n&3)*1024}{ntk}"); vm.add(("v", n))
    def wo_pf(lo=0, hi=None):
        if hi is None: hi = opts["ws1"]
        if lo >= hi: return
        mask = sum(1 << l for l in range(56) if lo <= l % 7 < hi)
        e(f"s_mov_b32 exec_lo, {mask & 0xffffffff:#x}"); e(f"s_mov_b32 exec_hi, {mask >> 32:#x}")
        wo_pf0()
        e("s_mov_b64 exec, -1")
    def wo_pf0():
        e(f"s_mul_i32 s68, s{S_B}, 28672"); e(f"s_mul_i32 s69, s{S_LW}, 7168"); e("s_add_u32 s68, s68, s69")
        e(f"v_lshlrev_b32 v6, 7, v0")
        fl = ["", " nt", " sc0 nt", " nt sc1", " sc0 nt sc1", " sc0", " sc1"][opts["wo_fl"]]
        if opts["wo_full"]:
            for i in range(7):
                e(f"buffer_load_dwordx4 {vr(DUM,4)}, v{VL}, {srd(SWO)}, s68 offen{fl}"); vm.add("pf"); e("s_add_u32 s68, s68, 1024")
        else:
            e(f"buffer_load_dword v{DUM}, v6, {srd(SWO)}, s68 offen{fl}"); vm.add("pf")
    miss = [(k_load, n) for n in range(16)] + [(v_load, n) for n in range(16)]
    if opts["pf"]: miss.insert(int(opts["wo_pos"]), (lambda n: wo_pf(), 0))
    def do_miss(cnt):
        for _ in range(cnt):
            if miss: f, n = miss.pop(0); f(n)
    assert opts['rf'] == 1 and not opts['rot']
    if not opts['rf']: do_miss(opts["m_pre"])
    for r in range(4):
        e(f"v_xor_b32 v1, {r<<2}, v0"); e(f"v_lshlrev_b32 v1, 4, v1"); e(f"v_add_u32 v{VQ+r}, {r*7168}, v1")
    e("v_lshrrev_b32 v2, 3, v0"); e("v_mul_u32_u24 v2, 896, v2"); e("v_and_b32 v3, 7, v0"); e("v_lshrrev_b32 v4, 4, v0")
    for n in range(2):
        e(f"v_add_u32 v5, {4*(n&1)}, v4"); e("v_xor_b32 v5, v5, v3"); e("v_lshl_add_u32 v5, v5, 4, v2")
        e(f"v_add_u32 v{VX+n}, {n*6144}, v5")
    S_QB, S_XB, S_LQ, S_LX, S_OB, S_LO = 4, 5, 30, 31, 62, 63
    e(f"s_lshl_b32 s{S_QB}, s{S_LW}, 15")
    e(f"s_lshl_b32 s{S_LQ}, s{S_LW}, 12")
    e(f"s_mul_i32 s{S_XB}, s{S_LW}, 14336")
    e(f"s_lshl_b32 s{S_LX}, s{S_LW}, 11"); e(f"s_add_u32 s{S_LX}, s{S_LX}, {XR}")
    def q_stage(t):
        e(f"s_add_u32 m0, s{S_LQ}, {(t%NSQ)*16384}")
        e(f"s_add_u32 s{S_SOFF}, s{S_QB}, {16*t*8192}")
        for r in range(4):
            off = f" offset:{r*1024}" if r else ""
            e(f"buffer_load_dwordx4 v{VQ+r}, {srd(SWQ)}, s{S_SOFF} offen{off}{ntr} lds"); vm.add(("q", t))
    def x_chunk(X):
        e(f"s_add_u32 m0, s{S_LX}, {(X%NXS)*8192}")
        e(f"s_add_u32 s{S_SOFF}, s{S_XB}, {X*128}")
        for n in range(2):
            off = f" offset:{n*1024}" if n else ""
            e(f"buffer_load_dwordx4 v{VX+n}, {srd(SX)}, s{S_SOFF} offen{off}{ntx} lds"); vm.add(("x", X))
    OSL = [98304, 114688, 131072, 147456, 0, 16384]
    if opts["od"]: OSL += [65536, 81920, 32768, 49152]
    def o_stage(t):
        e(f"s_add_u32 m0, s{S_LQ}, {OSL[t%len(OSL)]}")
        if opts["rot"]:
            if t % 4 == 0 and t:
                e("s_add_u32 s6, s6, 128"); e("s_cmp_eq_u32 s6, 896"); e("s_cselect_b32 s6, 0, s6"); e(f"s_add_u32 s7, s6, s{S_OB}")
            e(f"s_add_u32 s{S_SOFF}, s7, {128*(t%4)*896}")
        else: e(f"s_add_u32 s{S_SOFF}, s{S_OB}, {128*(t%4)*896 + (t//4)*128}")
        nto = " nt" if opts["nt_ringo"] else ""
        for n in range(4):
            off = f" offset:{n*1024}" if n else ""
            if opts["onoload"] == 2 and t > 5: e(f"buffer_load_dwordx4 {vr(128+16*(t%6)+4*n,4)}, v{VO+n}, {srd(SWO)}, s{S_SOFF} offen{off}"); vm.add(("o", t))
            elif opts["onoload"] == 3 and t > 5:
                if n < 2: e(f"buffer_load_dwordx4 v{VO+n}, {srd(SWO)}, s{S_SOFF} offen{off}{nto} lds"); vm.add(("o", t))
            elif not (opts["onoload"] and t > 5): e(f"buffer_load_dwordx4 v{VO+n}, {srd(SWO)}, s{S_SOFF} offen{off}{nto} lds"); vm.add(("o", t))
    RST = [opts["r0"] + opts["rstep"]*i for i in range(opts["nreg"])]
    WR = 128
    rq = list(range(opts["nreg"]))
    def r_load(cnt):
        for _ in range(cnt):
            if not rq: return
            i = rq.pop(0); t = RST[i]
            e(f"s_add_u32 s{S_SOFF}, s{S_OB}, {128*(t%4)*896 + (t//4)*128}")
            for n in range(4):
                off = f" offset:{n*1024}" if n else ""
                e(f"buffer_load_dwordx4 {vr(WR+16*i+4*n,4)}, v{VO+n}, {srd(SWO)}, s{S_SOFF} offen{off}"); vm.add(("r", t))
    def o_fill(t):
        if t not in RST: return o_stage(t)
        i = RST.index(t)
        vm.wait([("r", t)])
        e(f"s_add_u32 s68, s{S_LQ}, {OSL[t%len(OSL)]}"); e(f"v_add_u32 v5, s68, v{VL}")
        for n in range(4): e(f"ds_write_b128 v5, {vr(WR+16*i+4*n,4)} offset:{n*1024}")
    x_chunk(0)
    if opts['rf'] == 2:
        q_stage(0); q_stage(1); do_pf(); q_stage(2); q_stage(3); x_chunk(1); q_stage(4); do_miss(opts["m_pre"])
    else:
        for t in range(min(4, opts["ini"])): q_stage(t)
        k_setup()
        if opts["ini"] >= 4: x_chunk(1)
        if not (DEEP and opts["init4"]) and opts["ini"] == 5: q_stage(4)
        if DEEP and not opts["init4"]:
            if opts['rf'] == 3: do_pf()
            q_stage(5); q_stage(6); q_stage(7); x_chunk(2); x_chunk(3)
        if opts['rf'] == 1: do_pf()
        if opts['rf']: do_miss(opts["m_pre"])
    do_miss(opts["m_post"])
    c("remaining address setup (off the critical path)")
    e("v_lshrrev_b32 v1, 3, v0"); e("v_mul_u32_u24 v1, 896, v1"); e("v_and_b32 v2, 7, v0"); e("v_bfe_u32 v3, v0, 4, 1")
    e("v_lshlrev_b32 v3, 2, v3"); e("v_xor_b32 v2, v2, v3"); e("v_lshl_add_u32 v1, v2, 4, v1")
    for n in range(4): e(f"v_add_u32 v{VO+n}, {n*6144}, v1")
    e(f"s_mul_i32 s{S_OB}, s{S_LW}, 28672")
    if opts["rot"]:
        e(f"s_mul_i32 s6, s{S_B}, 37"); e("s_lshr_b32 s6, s6, 8"); e("s_mul_i32 s6, s6, 7"); e(f"s_sub_u32 s6, s{S_B}, s6")
        e("s_lshl_b32 s6, s6, 7"); e(f"s_add_u32 s7, s6, s{S_OB}")
    e("v_lshrrev_b32 v1, 5, v0"); e("v_and_b32 v2, 31, v0")
    for par in range(2):
        e(f"v_or_b32 v4, {2*par}, v1"); e("v_lshlrev_b32 v4, 2, v4"); e("v_xor_b32 v4, v4, v2"); e("v_lshlrev_b32 v4, 4, v4")
        e("v_lshl_add_u32 v4, v1, 9, v4"); e(f"v_add_u32 v{VW+par}, s{S_KV}, v4")
    def qphase(grp):
        acc = opts["mfirst"]
        BQ = opts["bq"]
        for t in range(0, 29, BQ):
            if t < 28: vm.wait([("q", t), ("q", t+BQ-1), ("x", t//4)])
            elif DEEP: e("s_waitcnt lgkmcnt(0)")
            else:
                while miss and miss[0][0] is k_load: do_miss(1)
                vm.wait(["k"])
            e(f"s_barrier ; B{t}")
            if t == 0 and DEEP and opts["init4"]:
                if grp is not None and opts[f"k{grp}"] < 0: do_miss(16)
                if grp is not None and opts[f"v{grp}"] < 0: do_miss(99)
                q_stage(4); q_stage(5); q_stage(6); q_stage(7); x_chunk(2); x_chunk(3)
            if t == 0 and not DEEP:
                for u in range(opts["ini"], 4): q_stage(u)
                if opts["ini"] < 4: x_chunk(1)
                if opts["ini"] < 5: q_stage(4)
            for u in range(t + NSQ - BQ, t + NSQ):
                if t >= 1 and u < 28: q_stage(u)
            if t >= 4 and t % 4 == 0 and t//4 + NXS - 1 <= 6: x_chunk(t//4 + NXS - 1)
            if DEEP and t == opts["kw_at"]:
                while miss and miss[0][0] is k_load: do_miss(1)
                e(f"s_add_u32 s68, s{S_KV}, {KR}"); e(f"v_add_u32 v1, s68, v{VL}")
                for n in range(16):
                    if n % 4 == 0: vm.wait([("k", n+3)])
                    e(f"ds_write_b128 v1, {vr(KD+4*n,4)} offset:{n*1024}")
            if grp is None:
                acc += BQ * opts["m_rate"] / 100.0
                q_pf(t)
                n = int(acc) if t % opts["mb"] == 0 else 0
                acc -= n; do_miss(n)
                if 28 - opts["rpre"] <= t < 28 and not miss: r_load(1)
            else:
                if t == opts[f"k{grp}"]: do_miss(16)
                if t == opts[f"v{grp}"]: do_miss(99)
        do_miss(99)
        if opts["wt2"] == -3: wo_pf(opts["ws1"], opts["ws2"])
        if not opts["rpos"]: r_load(99)
        for n in range(16):
            if n % 4 == 0: vm.wait([("v", n+3)])
            e(f"ds_write_b128 v{VW+(n&1)}, {vr(VD+4*n,4)} offset:{n*1024}")
    if opts["stag"]:
        c("K/V miss bursts are staggered over batch groups (b&3): each CU streams L2 hits at full rate outside its burst")
        e(f"s_and_b32 s68, s{S_B}, 3")
        for g in range(1, 4): e(f"s_cmp_eq_u32 s68, {g}"); e(f"s_cbranch_scc1 L_qg{g}")
        ops0 = list(vm.ops); miss0 = list(miss)
        for g in range(4):
            lab(f"L_qg{g}")
            vm.ops = list(ops0); miss[:] = miss0
            qphase(g)
            vm.wait(["pf"]); assert not vm.ops, vm.ops
            if g < 3: e("s_branch L_qgdone")
        lab("L_qgdone")
    else: qphase(None)
    e("s_waitcnt lgkmcnt(0)")
    e("s_barrier ; B29")
    if opts["wt2"] == -2: wo_pf(opts["ws1"], opts["ws2"])
    for t in range(0, 4): o_stage(t)
    if opts["rpos"] == 1: r_load(99)
    if opts["wt2"] == -1: wo_pf(opts["ws1"], opts["ws2"])
    if opts["rpos"] == 2: r_load(99)
    BO = opts["bo"]
    for t in range(0, 29, BO):
        if t < 28: vm.wait([("o", t), ("o", t+BO-1)])
        if t in RST or t+BO-1 in RST: e("s_waitcnt lgkmcnt(0)")
        e(f"s_barrier ; B'{t}")
        if t == 0: o_fill(4); o_fill(5)
        if t == opts["wt2"]: wo_pf(opts["ws1"], opts["ws2"])
        if t == opts["wt3"]: wo_pf(max(opts["ws1"], opts["ws2"]), 7)
        if opts["od"] and BO == 2:
            for u in {0: [], 2: [6, 7], 4: [8, 9, 10, 11], 6: [12, 13, 14, 15]}.get(t, [t + 8, t + 9]):
                if u < 28: o_fill(u)
        elif opts["od"]:
            for u in {1: [6, 7], 2: [], 3: [8, 9, 10], 4: [11, 12], 5: [13, 14]}.get(t, [t + 9] if t else []):
                if u < 28: o_fill(u)
        else:
            for u in range(t + 6 - BO, t + 6):
                if t >= 1 and u < 28: o_fill(u)
        if t == 16 and opts["er"]:
            c("wave 7: all hand-off lines of the group were reset (normally true long ago)")
            e(f"s_cmp_lg_u32 s{S_WAVE}, 7"); e("s_cbranch_scc1 L_rpolled")
            e(f"s_mov_b32 s{S_CNT}, 0x40000")
            lab("L_rpoll")
            e("v_readfirstlane_b32 s68, v3")
            e("s_cmp_ge_u32 s68, 8"); e("s_cbranch_scc1 L_rpolled")
            e("s_sleep 8")
            e(f"buffer_load_dword v3, v1, {srd(SDBG)}, 0 offen sc1"); e("s_waitcnt vmcnt(0)")
            e(f"s_sub_u32 s{S_CNT}, s{S_CNT}, 1"); e(f"s_cmp_lg_u32 s{S_CNT}, 0"); e("s_cbranch_scc1 L_rpoll")
            lab("L_rpolled")
        if t == (9 if opts["er"] else 22) and opts["flg"]:
            e(f"s_cmp_eq_u32 s{S_WAVE}, 7"); e("v_mov_b32 v1, 0"); e("v_mov_b32 v3, 0"); e("s_cselect_b64 exec, 1, 0")
            e(f"buffer_load_dword v3, v1, {srd(SDBG)}, 0 offen sc1"); vm.add("chk")
            e("s_mov_b64 exec, -1")
    if opts["er"]:
        if opts["er"] == 1: e(f"s_mov_b32 s12, s{S_LW}"); e("s_mov_b32 s13, 0")
        else:
            e(f"s_cmp_eq_u32 s{S_WAVE}, 7"); e("s_cbranch_scc1 L_end")
            e(f"s_mov_b32 s12, s{S_WAVE}"); e("s_movk_i32 s13, 128")
        e("s_branch L_tail2")
        return
    if opts["flg"]:
        c("wave 7: all hand-off lines of the group were reset (normally true long ago)")
        e(f"s_cmp_lg_u32 s{S_WAVE}, 7"); e("s_cbranch_scc1 L_tail")
        e(f"s_mov_b32 s{S_CNT}, 0x40000")
        e("s_branch L_rchk")
        lab("L_rpoll")
        e(f"buffer_load_dword v3, v1, {srd(SDBG)}, 0 offen sc1")
        lab("L_rchk")
        e("s_waitcnt vmcnt(0)")
        e("v_readfirstlane_b32 s68, v3")
        e("s_cmp_ge_u32 s68, 8"); e("s_cbranch_scc1 L_rpolled")
        e("s_sleep 8")
        e(f"s_sub_u32 s{S_CNT}, s{S_CNT}, 1"); e(f"s_cmp_lg_u32 s{S_CNT}, 0"); e("s_cbranch_scc1 L_rpoll")
        lab("L_rpolled")
        fs = opts["fstride"]
        e(f"s_lshl_b32 s68, s{S_HP}, {fs}"); e(f"v_lshlrev_b32 v1, {opts['pl']}, v0"); e("v_add_u32 v1, s68, v1")
        e(f"s_lshl_b32 s68, s{S_HP}, {opts['pl']}"); e(f"v_lshlrev_b32 v4, {fs}, v0"); e("v_add_u32 v4, s68, v4")
        e("v_mov_b32 v2, 1")
    e("s_branch L_tail" if opts["fused"] else "s_endpgm")

def reduce_setup():
    e("s_mul_i32 s68, s64, 458752"); make_srd(SWS, 28, 68, 458752)
    e("s_mov_b32 s68, 0"); make_srd(SOUT, 24, 68, 1835008)
    e("v_lshlrev_b32 v1, 4, v0")
    e("s_and_b32 s69, s66, 1"); e("s_lshr_b32 s70, s66, 1")
    e("s_cmp_ge_u32 s70, 14"); e("s_cselect_b32 s71, 1, 0"); e("s_mul_i32 s72, s71, 14"); e("s_sub_u32 s70, s70, s72")
    e("s_and_b32 s72, s64, 15"); e("s_lshr_b32 s73, s64, 4")
    e("s_lshl_b32 s72, s72, 1"); e("s_add_u32 s72, s72, s71"); e("s_mul_i32 s72, s72, 57344")
    e("s_mul_i32 s73, s73, 896"); e("s_add_u32 s72, s72, s73"); e("s_lshl_b32 s70, s70, 6"); e("s_add_u32 s72, s72, s70")
    e("s_lshl_b32 s69, s69, 4"); e("s_add_u32 s72, s72, s69")
    e("v_and_b32 v2, 31, v0"); e("v_mul_u32_u24 v2, 1792, v2"); e("v_lshrrev_b32 v3, 5, v0"); e("v_lshl_add_u32 v2, v3, 5, v2")
    e("s_lshl_b32 s68, s66, 10")

def reduce_body(fl):
    for j in range(8):
        e(f"buffer_load_dwordx4 {vr(8+4*j,4)}, v1, {srd(SWS)}, s68 offen{fl}")
        if j < 7: e("s_add_u32 s68, s68, 57344")
    for j in range(8):
        e(f"s_waitcnt vmcnt({7-j})")
        for i in range(4):
            if j == 0:
                e(f"v_lshlrev_b32 v{40+2*i}, 16, v{8+i}"); e(f"v_and_b32 v{41+2*i}, 0xffff0000, v{8+i}")
            else:
                e(f"v_lshlrev_b32 v4, 16, v{8+4*j+i}"); e(f"v_and_b32 v5, 0xffff0000, v{8+4*j+i}")
                e(f"v_add_f32 v{40+2*i}, v{40+2*i}, v4"); e(f"v_add_f32 v{41+2*i}, v{41+2*i}, v5")
    for i in range(4): e(f"v_cvt_pk_bf16_f32 v{48+i}, v{40+2*i}, v{41+2*i}")
    e(f"buffer_store_dwordx4 v[48:51], v2, {srd(SOUT)}, s72 offen" + ["", " nt", " sc1", " sc0 sc1"][opts["ofl"]])

def reduce_kernel():
    lab("reduce_kernel")
    e("s_cmp_ge_u32 s2, 256"); e("s_cbranch_scc1 R_end")
    e("s_load_dwordx2 s[24:25], s[0:1], 80")
    e("s_load_dwordx2 s[28:29], s[0:1], 96")
    e("v_lshrrev_b32 v1, 6, v0"); e("v_and_b32 v0, 63, v0"); e("s_nop 0"); e("v_readfirstlane_b32 s3, v1")
    e("s_lshr_b32 s64, s2, 3"); e("s_and_b32 s65, s2, 7")
    e("s_mul_i32 s66, s65, 7"); e("s_add_u32 s66, s66, s3")
    e("s_waitcnt lgkmcnt(0)")
    reduce_setup()
    reduce_body("")
    lab("R_end")
    e("s_endpgm")

def kd(name, vg, sg=102):
    return f""".amdhsa_kernel {name}
  .amdhsa_next_free_vgpr {vg}
  .amdhsa_next_free_sgpr {sg}
  .amdhsa_accum_offset {(vg+3)//4*4}
  .amdhsa_group_segment_fixed_size 0
  .amdhsa_kernarg_size 104
  .amdhsa_user_sgpr_count 2
  .amdhsa_user_sgpr_kernarg_segment_ptr 1
  .amdhsa_system_sgpr_workgroup_id_x 1
.end_amdhsa_kernel"""

MK = NAME + "_kernel" if opts["fused"] else "main_kernel"
hdr = "; Fused 2-branch cached-MHA block (Q-proj, attention, out-proj) for gfx950 -- generated by gen/gen.py\n"
if opts["fused"]: hdr += "; @launch grid=(256,1,1) block=(512,1,1) lds=163840\n"
else: hdr += "; @launch kernel=main_kernel grid=(256,1,1) block=(512,1,1) lds=163840\n; @launch kernel=reduce_kernel grid=(256,1,1) block=(448,1,1) lds=0\n"
hdr += '.amdgcn_target "amdgcn-amd-amdhsa--gfx950"\n.text'
out = [hdr, f".globl {MK}", ".p2align 8", f".type {MK},@function"]
main_kernel(); out += L; L.clear()
if not opts["fused"]:
    out += [".globl reduce_kernel", ".p2align 8", ".type reduce_kernel,@function"]
    reduce_kernel(); out += L; L.clear()
out += ['.section .rodata,"a"', ".p2align 6", kd(MK, 256)]
if not opts["fused"]: out += [".p2align 6", kd("reduce_kernel", 56)]
open(sys.argv[1], "w").write("\n".join(out) + "\n")
```

```python
import sys
NAME = "concat_heads__mha_block_cached__mha_block_cached__near_ridge"
opts = dict(xs=1, ofl=2, od=0, rpos=0, ini=4, ws1=2, ws2=7, wt2=-1, wt3=8, pq1=-1, pq2=4, pq3=12, pfq=1, mb=4, mfirst=2, qg1=0, qun=1, pl=2, rowmap=1, er=0, bq=1, bo=1, nreg=2, r0=4, rstep=1, rpre=0, wil=0, pvx=-1, qs=9, dry=0, rot=0, init4=1, stag=0, k0=0, k1=7, k2=13, k3=19, v0=0, v1=7, v2=13, v3=19, deep=0, kw_at=24, rf=1, flg=1, tlbw=1, fstride=8, st_fl=0, sleep=1, fused=1, stamps=0, nt_kv=1, delay_kv=0, pf=1, pf_at=12, noread=0, nomfma=0, noprio=0, nokv=0, nt_pf=0, nt_ring=0, nt_x=0, m_pre=0, m_post=0, m_rate=100, wo_pos=28, wo_fl=0, wo_full=0, onoread=0, onomfma=0, onoload=0, nt_ringo=0)
for a in sys.argv[2:]:
    k, v = a.split("="); opts[k] = int(v)
L = []
def e(s): L.append("    " + s)
def lab(s): L.append(s + ":")
def c(s): L.append("    ; " + s)
def vr(a, n): return f"v[{a}:{a+n-1}]"

DEEP = opts['deep']
RING_Q = 0; NSQ = 8 if DEEP else 5; XR = 131072 if DEEP else 81920; KR = 65536 if DEEP else 98304; NXS = 4 if DEEP else 2; VR = 0; RING_O = 65536; NSO = 6; EX = 0
S_WAVE = 3
SX, SK, SV, SWQ, SWO, SWS, SDBG, SOUT = 32, 36, 40, 44, 48, 52, 56, 60
S_BR, S_B, S_HP, S_PAIR = 64, 65, 66, 67
S_T0, S_T1, S_T2, S_T3 = 68, 69, 70, 71
S_SLOT, S_CNT, S_SOFF, S_C = 72, 73, 74, 75
SB = 78
SFLG = 16
def srd(n): return f"s[{n}:{n+3}]"

class VM:
    def __init__(s): s.ops = []
    def add(s, tag):
        s.ops.append(tag)
        if len(s.ops) > 60: e("s_waitcnt vmcnt(59)"); s.ops = s.ops[-59:]
    def wait(s, tags):
        idx = max([i for i, t in enumerate(s.ops) if t in tags], default=-1)
        n = len(s.ops) - 1 - idx
        assert n <= 63
        if idx >= 0:
            e(f"s_waitcnt vmcnt({n})")
            s.ops = s.ops[idx+1:]

def stamp(i):
    if opts["stamps"]:
        e(f"s_memtime s[{78+2*i}:{79+2*i}]" if i else "s_memtime s[78:79]") if False else e(f"s_memtime s[{SB+2*i}:{SB+1+2*i}]")

def make_srd(n, plo, add_lo, nrec):
    e(f"s_add_u32 s{n}, s{plo}, s{add_lo}")
    e(f"s_addc_u32 s{n+1}, s{plo+1}, 0")
    e(f"s_and_b32 s{n+1}, s{n+1}, 0xffff")
    if isinstance(nrec, int): e(f"s_mov_b32 s{n+2}, {nrec}")
    else: e(f"s_mov_b32 s{n+2}, {nrec}")
    e(f"s_mov_b32 s{n+3}, 0x20000")

def decode_wg():
    e("s_and_b32 s68, s2, 7")
    e("s_lshr_b32 s69, s2, 3")
    e(f"s_lshr_b32 s{S_BR}, s68, 2")
    e(f"s_and_b32 s{S_PAIR}, s69, 1")
    e(f"s_lshr_b32 s{S_B}, s69, 1")
    e("s_and_b32 s68, s68, 3")
    e("s_lshl_b32 s68, s68, 1")
    e(f"s_add_u32 s{S_HP}, s68, s{S_PAIR}")

def rest_srds():
    e(f"s_lshl_b32 s68, s{S_B}, 19"); e(f"s_lshl_b32 s69, s{S_HP}, 16"); e("s_add_u32 s68, s68, s69")
    make_srd(SK, 6, 68, 65536); make_srd(SV, 8, 68, 65536)
    e(f"s_mul_i32 s68, s{S_HP}, 458752"); make_srd(SWO, 12, 68, 458752)
    e(f"s_lshl_b32 s68, s{S_BR}, 4"); e(f"s_add_u32 s68, s68, s{S_B}"); e("s_lshl_b32 s68, s68, 3")
    e(f"s_add_u32 s68, s68, s{S_HP}"); e("s_mul_i32 s68, s68, 57344"); make_srd(SWS, 28, 68, 57344)
    if opts["flg"]:
        fs = opts["fstride"]
        e(f"s_lshl_b32 s68, s{S_BR}, 4"); e(f"s_add_u32 s68, s68, s{S_B}"); e("s_lshl_b32 s68, s68, 3")
        make_srd(SDBG, 26, 68, 4)
        e(f"s_lshl_b32 s68, s68, {fs}"); e("s_add_u32 s68, s68, 0x4000000"); make_srd(SFLG, 28, 68, 8 << fs)

def main_kernel():
    lab(MK)
    e("s_cmp_ge_u32 s2, 256")
    e("s_cbranch_scc1 L_end")
    e("s_load_dwordx16 s[4:19], s[0:1], 0")
    e("s_load_dwordx8 s[20:27], s[0:1], 64")
    e("s_load_dwordx2 s[28:29], s[0:1], 96")
    stamp(0)
    e("v_lshrrev_b32 v1, 6, v0")
    e("v_and_b32 v0, 63, v0")
    e("s_nop 0")
    e(f"v_readfirstlane_b32 s{S_WAVE}, v1")
    decode_wg()
    e("s_waitcnt lgkmcnt(0)")
    e(f"s_cmp_eq_u32 s{S_BR}, 0")
    e("s_cselect_b64 s[4:5], s[4:5], s[14:15]")
    e("s_cselect_b64 s[6:7], s[6:7], s[16:17]")
    e("s_cselect_b64 s[8:9], s[8:9], s[18:19]")
    e("s_cselect_b64 s[10:11], s[10:11], s[20:21]")
    e("s_cselect_b64 s[12:13], s[12:13], s[22:23]")
    if opts["stamps"]: e("s_memrealtime s[14:15]")
    e(f"s_mul_i32 s68, s{S_B}, 57344"); make_srd(SX, 4, 68, 57344)
    e(f"s_lshl_b32 s68, s{S_HP}, 10"); e("s_sub_u32 s69, 3670016, s68"); make_srd(SWQ, 10, 68, "s69")
    e(f"s_cmp_lt_u32 s{S_WAVE}, 4"); e("s_cbranch_scc1 L_compute")
    loader()
    lab("L_compute")
    compute()
    lab("L_end")
    e("s_endpgm")

MF = "v_mfma_f32_32x32x16_bf16"
def compute():
    c("================= compute waves 0..3 =================")
    ACC = 0; AF = 128; XF = 192; AQB = 200; AQC = 204; AX = 208; AXT = 209; DUM = 210
    AK = 240; AV = 241; AO = 245; AOC = 246; AEW = 247; AER = 248; AST = 249; T0 = 250; T1 = 251; T2 = 252; T3 = 253; T4 = 254
    if not opts["noprio"]: e("s_setprio 1")
    rest_srds()
    S_HH, S_QH = 76, 77
    e(f"s_lshr_b32 s{S_HH}, s{S_WAVE}, 1"); e(f"s_and_b32 s{S_QH}, s{S_WAVE}, 1")
    c("lane decomposition: G=l>>4 r=(l>>2)&3 cc=l&3")
    e(f"v_bfe_u32 v1, v0, 2, 2")
    e(f"v_lshrrev_b32 v2, 5, v0")
    e(f"v_bfe_u32 v3, v0, 4, 1")
    e(f"v_and_b32 v4, 1, v0")
    e(f"v_bfe_u32 v5, v0, 1, 1")
    e(f"v_and_b32 v6, 31, v0")
    e("v_lshlrev_b32 v7, 13, v2"); e("v_lshl_add_u32 v7, v1, 10, v7")
    e("v_lshl_add_u32 v7, v3, 5, v7"); e("v_lshl_add_u32 v7, v4, 4, v7"); e("v_lshl_add_u32 v7, v5, 3, v7")
    e(f"s_lshl_b32 s68, s{S_HH}, 9"); e("v_add_u32 v7, s68, v7")
    for d in range(4):
        e(f"v_xor_b32 v8, {d}, v1"); e(f"v_lshl_add_u32 v{AQB+d}, v8, 6, v7")
    e("v_bfe_u32 v8, v0, 1, 3"); e("v_xor_b32 v8, v8, v2"); e("v_lshlrev_b32 v8, 4, v8"); e("v_lshl_add_u32 v8, v6, 7, v8")
    e(f"s_lshl_b32 s68, s{S_QH}, 12"); e(f"s_add_u32 s68, s68, {XR}"); e(f"v_add_u32 v{AX}, s68, v8")
    e("v_and_b32 v8, 15, v0"); e("v_xor_b32 v8, v8, v2"); e("v_lshlrev_b32 v8, 4, v8"); e("v_lshl_add_u32 v8, v6, 9, v8")
    e(f"s_lshl_b32 s69, s{S_HH}, 15"); e(f"s_add_u32 s68, s69, {KR}"); e(f"v_add_u32 v{AK}, s68, v8")
    e("v_lshlrev_b32 v7, 11, v2"); e("v_lshl_add_u32 v7, v1, 9, v7"); e("v_lshl_add_u32 v7, v3, 5, v7")
    e("v_and_b32 v8, 3, v0"); e("v_lshl_add_u32 v7, v8, 3, v7"); e("v_add_u32 v7, s69, v7")
    for d in range(4):
        e(f"v_xor_b32 v8, {d}, v1"); e(f"v_lshl_add_u32 v{AV+d}, v8, 6, v7")
    e("v_lshl_add_u32 v7, v2, 2, v1"); e("v_lshlrev_b32 v7, 7, v7")
    e("v_lshl_add_u32 v7, v4, 5, v7"); e("v_lshl_add_u32 v7, v3, 4, v7"); e("v_lshl_add_u32 v7, v5, 3, v7")
    e("v_lshrrev_b32 v8, 1, v1"); e(f"v_xor_b32 v8, s{S_HH}, v8"); e(f"v_lshl_add_u32 v{AO}, v8, 6, v7")
    e("v_lshlrev_b32 v7, 4, v0")
    e(f"s_lshl_b32 s68, s{S_QH}, 14"); e(f"s_lshl_b32 s69, s{S_HH}, 15")
    e(f"s_sub_u32 s70, 65536, s69"); e("s_add_u32 s70, s70, s68"); e(f"v_add_u32 v{AEW}, s70, v7")
    e(f"s_add_u32 s70, 32768, s69"); e("s_add_u32 s70, s70, s68"); e(f"v_add_u32 v{AER}, s70, v7")
    e(f"s_mul_i32 s68, s{S_QH}, 14"); e(f"s_add_u32 s68, s68, s{S_HH}"); e("s_lshl_b32 s68, s68, 11")
    e(f"v_add_u32 v{AST}, s68, v7")
    e(f"s_cmp_eq_u32 s{S_HH}, 0"); e("s_cselect_b64 s[8:9], -1, 0")
    if opts["flg"]:
        c("wave 0: reset this workgroup's hand-off line in ws")
        e(f"s_cmp_lg_u32 s{S_WAVE}, 0"); e("s_cbranch_scc1 L_noreset")
        e(f"s_lshl_b32 s68, s{S_HP}, {opts['fstride']}")
        e(f"v_lshlrev_b32 v8, {2 if opts['er'] else opts['pl']}, v0"); e("v_mov_b32 v9, 0")
        if not opts["er"]: e("s_mov_b64 exec, 0xff")
        e(f"buffer_store_dword v9, v8, {srd(SFLG)}, s68 offen sc1")
        e("s_mov_b64 exec, -1")
        lab("L_noreset")
    if opts["tlbw"]:
        c("wave 1: touch the partial slab / output pages (address translation warm-up; values unused)")
        e(f"s_cmp_lg_u32 s{S_WAVE}, 1"); e("s_cbranch_scc1 L_notlb")
        e(f"s_mul_i32 s68, s{S_B}, 114688"); make_srd(SOUT, 24, 68, 57344)
        e("v_mov_b32 v9, 0")
        e(f"buffer_load_dword v{T3}, v9, {srd(SWS)}, 0 offen sc1")
        e(f"buffer_load_dword v{T4}, v9, {srd(SOUT)}, 0 offen sc1")
        lab("L_notlb")
    e("s_mov_b32 s11, 0")
    if opts["dry"]:
        c("instruction-cache warm-up: run the attention section once with all lanes off")
        e("s_mov_b32 s11, 1"); e("s_mov_b64 exec, 0"); e("s_branch L_S")
        lab("L_dryret")
        e("s_mov_b32 s11, 0"); e("s_mov_b64 exec, -1")
    c("zero Q accumulators")
    if not opts["qun"]:
        for i in range(128): e(f"v_mov_b32 v{i}, 0")
    def q_reads(buf, piece):
        r = [f"ds_read_b128 {vr(XF+4*buf,4)}, v{AXT}"]
        for dt in range(8):
            for u in range(2):
                r.append(f"ds_read_b64_tr_b16 {vr(AF+32*buf+4*dt+2*u,2)}, v{AQC+(dt&3)} offset:{u*4096+(dt>>2)*256}")
        return r
    if opts["qun"]:
        AXP = 212
        for d in range(4): e(f"v_add_u32 v{AQC+d}, 0x10000, v{AQB+d}")
        for p in range(4): e(f"v_xor_b32 v{AXP+p}, {p<<5}, v{AX}")
        def q_rd(t):
            buf = t & 1; sl = (t % NSQ) * 16384
            r = [f"ds_read_b128 {vr(XF+4*buf,4)}, v{AXP+(t&3)} offset:{((t//4) % NXS)*8192}"]
            for dt in range(8):
                for u in range(2):
                    r.append(f"ds_read_b64_tr_b16 {vr(AF+32*buf+4*dt+2*u,2)}, v{(AQC if sl >= 65536 else AQB)+(dt&3)} offset:{(sl & 65535)+u*4096+(dt>>2)*256}")
            return r
        stamp(1)
        e("s_barrier ; B0")
        stamp(2)
        for r in q_rd(0): e(r)
        for t in range(28):
            cur = t & 1
            m = [f"{MF} {vr(16*dt,16)}, {vr(AF+32*cur+4*dt,4)}, {vr(XF+4*cur,4)}, {vr(16*dt,16) if t else 0}" for dt in range(8)]
            rd = q_rd(t+1) if t < 27 else []
            e("s_waitcnt lgkmcnt(14)")
            e(m[0])
            e("s_waitcnt lgkmcnt(0)")
            if opts["bq"] == 1 or t & 1: e(f"s_barrier ; B{t+1}")
            for j in range(1, 8):
                for _ in range(opts["qg1"] if j == 1 else 3):
                    if rd: e(rd.pop(0))
                e(m[j])
            assert not rd
    else:
        e(f"s_mov_b32 s{S_SLOT}, 0")
        for d in range(4): e(f"v_mov_b32 v{AQC+d}, v{AQB+d}")
        e(f"v_mov_b32 v{AXT}, v{AX}")
        stamp(1)
        e("s_barrier ; B0")
        stamp(2)
        for r in q_reads(0, 0): e(r)
        def q_upd(p):
            e(f"s_add_u32 s{S_SLOT}, s{S_SLOT}, 16384"); e(f"s_cmp_eq_u32 s{S_SLOT}, {NSQ*16384}"); e(f"s_cselect_b32 s{S_SLOT}, 0, s{S_SLOT}")
            if p % 4 == 3:
                if DEEP: e(f"v_add_u32 v{AX}, 0x2000, v{AX}"); e(f"v_and_b32 v{AX}, 0x27fff, v{AX}")
                else: e(f"v_xor_b32 v{AX}, 0x2000, v{AX}")
            e(f"v_xor_b32 v{AXT}, {((p+1)&3)<<5}, v{AX}")
            for d in range(4): e(f"v_add_u32 v{AQC+d}, s{S_SLOT}, v{AQB+d}")
        q_upd(0)
        e(f"s_mov_b32 s{S_CNT}, 7")
        lab("L_qloop")
        for p in range(4):
            cur = p & 1; nxt = cur ^ 1
            m = [f"{MF} {vr(16*dt,16)}, {vr(AF+32*cur+4*dt,4)}, {vr(XF+4*cur,4)}, {vr(16*dt,16)}" for dt in range(8)]
            rd = q_reads(nxt, (p+1) & 3)
            e("s_waitcnt lgkmcnt(14)")
            e(m[0])
            e("s_waitcnt lgkmcnt(0)")
            if opts["bq"] == 1 or p & 1: e("s_barrier")
            k = 0
            if opts["noread"]: rd = []
            for j in range(1, 8):
                for _ in range(3 if j > 1 else 1):
                    if k < len(rd): e(rd[k]); k += 1
                if j == 7: q_upd(p + 1)
                if not opts["nomfma"]: e(m[j])
            assert k == len(rd)
        e(f"s_sub_u32 s{S_CNT}, s{S_CNT}, 1"); e(f"s_cmp_lg_u32 s{S_CNT}, 0"); e("s_cbranch_scc1 L_qloop")
    stamp(3)
    if opts["flg"] or opts["tlbw"]: e("s_waitcnt vmcnt(0)")
    if opts["flg"]:
        e(f"s_cmp_lg_u32 s{S_WAVE}, 0"); e("s_cbranch_scc1 L_nocnt")
        e(f"v_mov_b32 v{T3}, 0"); e(f"v_mov_b32 v{T4}, 1")
        e("s_mov_b64 exec, 1")
        e(f"buffer_atomic_add v{T4}, v{T3}, {srd(SDBG)}, 0 offen sc1")
        e("s_mov_b64 exec, -1")
        lab("L_nocnt")
    lab("L_S")
    c("---- S^T = K Q^T")
    QP = 128; KF = 192; SA = 208
    e("s_waitcnt lgkmcnt(0)")
    def kslot(n): return (KF + 4*(n&7)) if (n&7) < 4 else 4*((n&7)-4)
    def k_read(n):
        x = n >> 1; kt = n & 1
        return f"ds_read_b128 {vr(kslot(n),4)}, v{T0+(x&1)} offset:{kt*16384+(x>>3)*256}"
    def k_addr(x): return f"v_xor_b32 v{T0+(x&1)}, {(x&7)<<5}, v{AK}"
    def cvt_tile(src, dst):
        return [f"v_cvt_pk_bf16_f32 v{dst+i}, v{src+2*i}, v{src+2*i+1}" for i in range(8)]
    for n in range(4):
        if n % 2 == 0: e(k_addr(n >> 1))
        e(k_read(n))
    for x in cvt_tile(0, QP): e(x)
    for n in range(4, 8):
        if n % 2 == 0: e(k_addr(n >> 1))
        e(k_read(n))
    cv = [x for dt in range(1, 8) for x in cvt_tile(16*dt, QP+8*dt)]
    for n in range(32):
        dt = n >> 2; s_ = (n >> 1) & 1; kt = n & 1
        if n % 2 == 0: e(f"s_waitcnt lgkmcnt({min(6, 30-n)})")
        cin = "0" if n < 2 else vr(SA+16*kt, 16)
        e(f"{MF} {vr(SA+16*kt,16)}, {vr(kslot(n),4)}, {vr(QP+8*dt+4*s_,4)}, {cin}")
        if n >= 1:
            for _ in range(2):
                if cv: e(cv.pop(0))
        if n + 8 < 32:
            if n % 2 == 0: e(k_addr((n+8) >> 1))
            e(k_read(n+8))
    stamp(4)
    c("---- softmax over keys (32 in-lane values + partner half)")
    PP = 192
    e("s_nop 7"); e("s_nop 3")
    e(f"v_max3_f32 v{T0}, v{SA}, v{SA+1}, v{SA+2}")
    e(f"v_max3_f32 v{T1}, v{SA+16}, v{SA+17}, v{SA+18}")
    for i in range(3, 15, 2):
        e(f"v_max3_f32 v{T0}, v{T0}, v{SA+i}, v{SA+i+1}")
        e(f"v_max3_f32 v{T1}, v{T1}, v{SA+16+i}, v{SA+16+i+1}")
    e(f"v_max3_f32 v{T0}, v{T0}, v{SA+15}, v{SA+31}")
    e(f"v_max_f32 v{T0}, v{T0}, v{T1}")
    e(f"v_mov_b32 v{T1}, v{T0}"); e("s_nop 1")
    e(f"v_permlane32_swap_b32 v{T0}, v{T1}"); e("s_nop 1")
    e(f"v_max_f32 v{T0}, v{T0}, v{T1}")
    e("s_mov_b32 s12, 0x3db8aa3b ; 0.0625*log2(e)")
    e(f"v_mul_f32 v{T0}, s12, v{T0}")
    for i in range(0, 32, 2):
        e(f"v_pk_fma_f32 {vr(SA+i,2)}, {vr(SA+i,2)}, s[12:13], {vr(T0,2)} op_sel_hi:[1,0,0] neg_lo:[0,0,1] neg_hi:[0,0,1]")
        if i >= 2: e(f"v_exp_f32 v{SA+i-2}, v{SA+i-2}"); e(f"v_exp_f32 v{SA+i-1}, v{SA+i-1}")
        if i == 6: e(f"v_pk_add_f32 {vr(T2,2)}, {vr(SA,2)}, {vr(SA+2,2)}")
        if i > 6: e(f"v_pk_add_f32 {vr(T2,2)}, {vr(T2,2)}, {vr(SA+i-4,2)}")
    e(f"v_exp_f32 v{SA+30}, v{SA+30}"); e(f"v_exp_f32 v{SA+31}, v{SA+31}")
    e(f"v_pk_add_f32 {vr(T2,2)}, {vr(T2,2)}, {vr(SA+28,2)}"); e("s_nop 0")
    e(f"v_pk_add_f32 {vr(T2,2)}, {vr(T2,2)}, {vr(SA+30,2)}")
    e(f"v_add_f32 v{T0}, v{T2}, v{T3}")
    e(f"v_mov_b32 v{T1}, v{T0}"); e("s_nop 1")
    e(f"v_permlane32_swap_b32 v{T0}, v{T1}"); e("s_nop 1")
    e(f"v_add_f32 v{T0}, v{T0}, v{T1}")
    e(f"v_rcp_f32 v{T0}, v{T0}"); e("s_nop 0")
    for i in range(16):
        e(f"v_pk_mul_f32 {vr(SA+2*i,2)}, {vr(SA+2*i,2)}, {vr(T0,2)} op_sel_hi:[1,0]")
        if i: e(f"v_cvt_pk_bf16_f32 v{PP+i-1}, v{SA+2*i-2}, v{SA+2*i-1}")
    e(f"v_cvt_pk_bf16_f32 v{PP+15}, v{SA+30}, v{SA+31}")
    stamp(5)
    if opts["dry"]: e("s_cmp_eq_u32 s11, 1"); e("s_cbranch_scc1 L_nob29")
    e("s_barrier")
    lab("L_nob29")
    stamp(6)
    c("---- O^T = V^T P^T")
    VF = 208; OP = 128
    seq = [(2*dp+o, ks) for dp in range(4) for ks in range(4) for o in range(2)]
    def v_reads(n):
        dt, ks = seq[n]
        return [f"ds_read_b64_tr_b16 {vr(VF+4*(n&7)+2*u,2)}, v{AV+(dt&3)} offset:{(dt>>2)*256+(16*ks+8*u)*512}" for u in range(2)]
    PFD = 7
    for n in range(PFD):
        for r in v_reads(n): e(r)
    if not opts["xs"]: e(f"s_cmp_eq_u32 s{S_HH}, 0"); e("s_cbranch_scc0 L_pv1")
    for hh in ([1] if opts["xs"] else range(2)):
        if hh: lab("L_pv1")
        lg = []
        for n in range(PFD): lg += [n, n]
        def ex_write(dt):
            if hh: return
            e(f"ds_write_b128 v{AEW}, {vr(OP+8*dt,4)} offset:{2*dt*1024}"); e(f"ds_write_b128 v{AEW}, {vr(OP+8*dt+4,4)} offset:{(2*dt+1)*1024}")
            lg.extend(["w", "w"])
        for n, (dt, ks) in enumerate(seq):
            idx = max(i for i, t in enumerate(lg) if t == n); cnt = len(lg) - 1 - idx
            if opts["pvx"] < 2: e(f"s_waitcnt lgkmcnt({min(cnt,15)})")
            del lg[:idx+1]
            cin = "0" if ks == 0 else vr(16*dt, 16)
            e(f"{MF} {vr(16*dt,16)}, {vr(VF+4*(n&7),4)}, {vr(PP+4*ks,4)}, {cin}")
            if n + PFD < len(seq):
                for r in v_reads(n+PFD):
                    if opts["pvx"] < 2: e(r)
                    lg.append(n+PFD)
            if n >= 8 and opts["pvx"] in (0, -1):
                tl = 2*(n >> 3) - 2 + ((n >> 2) & 1)
                cv = cvt_tile(16*tl, OP+8*tl); e(cv[2*(n&3)]); e(cv[2*(n&3)+1])
                if n % 4 == 0 and tl >= 1 and opts["pvx"] == 0: ex_write(tl-1)
        if opts["xs"]: break
        if opts["pvx"] == -1:
            for tl in range(5): ex_write(tl)
        ex_write(5)
        e("s_nop 3")
        for x in cvt_tile(16*6, OP+48): e(x)
        ex_write(6)
        e("s_nop 3")
        for x in cvt_tile(16*7, OP+56): e(x)
        ex_write(7)
        if hh == 0: e("s_branch L_pvdone")
    lab("L_pvdone")
    e("s_waitcnt lgkmcnt(0)")
    if opts["dry"]: e("s_cmp_eq_u32 s11, 1"); e("s_cbranch_scc1 L_dryret")
    stamp(7)
    e("s_barrier")
    c("---- out projection: 7 passes of one 128-byte column block, K=512")
    PAR = 0; ACA = 64; ACB = 96; ACQ = 80
    sc = [" sc1", " sc0 sc1", " nt sc1", ""][opts["st_fl"]]
    S_ST = 10
    def o_rd(j, buf):
        return [f"ds_read_b64_tr_b16 {vr(buf+4*j+2*u,2)}, v{AOC} offset:{j*2048+u*1024}" for u in range(2)]
    def store_tile(acc):
        adds = [f"v_pk_add_f32 {vr(acc+2*i,2)}, {vr(acc+2*i,2)}, {vr(ACQ+2*i,2)}" for i in range(8)] if opts["qs"] == 3 else [f"v_add_f32 v{acc+i}, v{acc+i}, v{ACQ+i}" for i in range(16)]
        if opts["qs"] > 31: adds = []
        return adds + cvt_tile(acc, acc) + [
                                    f"buffer_store_dwordx4 {vr(acc,4)}, v{AST}, {srd(SWS)}, s{S_ST} offen{sc}",
                                    f"buffer_store_dwordx4 {vr(acc+4,4)}, v{AST}, {srd(SWS)}, s{S_ST} offen offset:1024{sc}",
                                    f"s_add_u32 s{S_ST}, s{S_ST}, 4096"] + ([f"s_cmp_eq_u32 s{S_ST}, {7*4096}", f"s_cselect_b32 s{S_ST}, 0, s{S_ST}"] if opts["rot"] else [])
    WF = [192, 16*7]
    def wf(buf, j):
        if buf == 0: return 192 + 4*j
        return 112 + 4*j if j < 4 else 224 + 4*(j-4)
    def o_reads(buf):
        return [f"ds_read_b64_tr_b16 {vr(wf(buf,j)+2*u,2)}, v{AOC} offset:{j*2048+u*1024}" for j in range(8) for u in range(2)]
    def o_upd(part=3):
        if opts["od"]:
            if part & 1:
                e(f"s_add_u32 s13, s{S_SLOT}, 16384"); e(f"s_cmp_eq_u32 s13, 163840"); e(f"s_cselect_b32 s{S_SLOT}, 0, s13")
                e(f"s_cmp_eq_u32 s13, 32768"); e(f"s_cselect_b32 s{S_SLOT}, 65536, s{S_SLOT}")
            if part & 2:
                e(f"s_cmp_eq_u32 s13, 98304"); e(f"s_cselect_b32 s{S_SLOT}, 32768, s{S_SLOT}")
                e(f"s_cmp_eq_u32 s13, 65536"); e(f"s_cselect_b32 s{S_SLOT}, 98304, s{S_SLOT}")
                e(f"v_add_u32 v{AOC}, s{S_SLOT}, v{AO}")
            return
        if not part & 1: return
        e(f"s_add_u32 s{S_SLOT}, s{S_SLOT}, 16384"); e(f"s_cmp_eq_u32 s{S_SLOT}, 163840"); e(f"s_cselect_b32 s{S_SLOT}, 0, s{S_SLOT}")
        e(f"s_cmp_eq_u32 s{S_SLOT}, 32768"); e(f"s_cselect_b32 s{S_SLOT}, 98304, s{S_SLOT}")
        e(f"v_add_u32 v{AOC}, s{S_SLOT}, v{AO}")
    def o_pass(hh, acc, prev, first):
        for st in range(4):
            cur = st & 1
            if st == 0: extra = store_tile(prev) if prev is not None else []
            exr = []
            if first and hh == 0 and st in (1,) and not opts['xs']:
                exr = [f"ds_read_b128 {vr(PAR+4*i,4)}, v{AER} offset:{i*1024}" for i in range(16)]
            if first and hh == 1 and st == 0 and opts["wil"]:
                exr = [f"ds_write_b128 v{AEW}, {vr(OP+4*i,4)} offset:{i*1024}" for i in range(16)]
            rd = o_reads(cur ^ 1) if not opts['onoread'] else []
            for j in range(8):
                kk = 8*st + j
                b = (OP if (kk >> 4) == hh else PAR) + 4*(kk & 15)
                ac = ACQ if (kk & 1 and kk >= opts["qs"]) else acc
                cin = "0" if kk in (0, opts["qs"]) else vr(ac, 16)
                if j == 0: e("s_waitcnt lgkmcnt(14)")
                e(f"{MF} {vr(ac,16)}, {vr(wf(cur,j),4)}, {vr(b,4)}, {cin}")
                if j == 0:
                    e("s_waitcnt lgkmcnt(0)")
                    if opts["bo"] == 1 or st & 1: e("s_barrier")
                if j < 7:
                    for _ in range(3 if (j % 3) != 2 else 2):
                        if exr: e(exr.pop(0))
                    for _ in range(1 if j == 0 else 3):
                        if rd: e(rd.pop(0))
                if j == 6: o_upd(1)
                if j == 7: o_upd(2)
                if kk >= 1:
                    for _ in range((4 if j < 3 else 3) if opts["qs"] == 3 else 2):
                        if extra: e(extra.pop(0))
            assert not rd and not exr and (st < 2 or not extra), (rd, extra, exr)
    e(f"s_mov_b32 s{S_SLOT}, 98304"); e(f"v_add_u32 v{AOC}, s{S_SLOT}, v{AO}")
    e(f"s_mov_b32 s{S_ST}, 0"); e(f"s_mov_b32 s{S_CNT}, 3")
    if opts["er"]:
        e(f"v_mbcnt_lo_u32_b32 v{T0}, -1, 0"); e(f"v_lshlrev_b32 v{T0}, 8, v{T0}"); e(f"v_mov_b32 v{T1}, 1")
        e(f"s_lshl_b32 s12, s{S_HP}, 2"); e(f"s_add_u32 s12, s12, s{S_WAVE}"); e("s_lshl_b32 s12, s12, 2")
    if opts["rot"]:
        e(f"s_mul_i32 s6, s{S_B}, 37"); e("s_lshr_b32 s6, s6, 8"); e("s_mul_i32 s6, s6, 7"); e(f"s_sub_u32 s6, s{S_B}, s6"); e(f"s_lshl_b32 s{S_ST}, s6, 12")
    if opts["xs"]:
        c("both heads publish O^T, one extra barrier, then everyone fetches the partner head's fragments")
        for r in o_reads(0): e(r)
        o_upd()
        def xw(i): e(f"ds_write_b128 v{AEW}, {vr(OP+4*i,4)} offset:{i*1024}")
        for i in range(6): xw(i)
        for x in cvt_tile(16*6, OP+48): e(x)
        for i in range(6, 12): xw(i)
        for x in cvt_tile(16*7, OP+56): e(x)
        for i in range(12, 16): xw(i)
        e("s_waitcnt lgkmcnt(0)"); e("s_barrier ; X")
        for i in range(16): e(f"ds_read_b128 {vr(PAR+4*i,4)}, v{AER} offset:{i*1024}")
    e(f"s_cmp_eq_u32 s{S_HH}, 0"); e("s_cbranch_scc0 L_oh1")
    for hh in range(2):
        if hh == 1:
            lab("L_oh1")
            if not opts["xs"]:
                for i in range(8): e(f"ds_read_b128 {vr(PAR+4*i,4)}, v{AER} offset:{i*1024}")
        if not opts["xs"]:
            for r in o_reads(0): e(r)
            o_upd()
        if hh == 1 and not opts["xs"]:
            for i in range(8, 16): e(f"ds_read_b128 {vr(PAR+4*i,4)}, v{AER} offset:{i*1024}")
            if not opts["wil"]:
                for i in range(16): e(f"ds_write_b128 v{AEW}, {vr(OP+4*i,4)} offset:{i*1024}")
                e("s_waitcnt lgkmcnt(15)")
        o_pass(hh, ACA, None, True)
        lab(f"L_oloop{hh}")
        o_pass(hh, ACB, ACA, False)
        if opts["er"] == 1:
            c("last trip: passes 0..3 of this wave are at the coherence point -> hand-off flag A")
            e(f"s_cmp_lg_u32 s{S_CNT}, 1"); e(f"s_cbranch_scc1 L_noA{hh}")
            e("s_waitcnt vmcnt(2)"); e("s_mov_b64 exec, 0xff")
            e(f"buffer_store_dword v{T1}, v{T0}, {srd(SFLG)}, s12 offen sc1")
            e("s_mov_b64 exec, -1")
            lab(f"L_noA{hh}")
        o_pass(hh, ACA, ACB, False)
        e(f"s_sub_u32 s{S_CNT}, s{S_CNT}, 1"); e(f"s_cmp_lg_u32 s{S_CNT}, 0"); e(f"s_cbranch_scc1 L_oloop{hh}")
        if hh == 0: e("s_branch L_odone")
    lab("L_odone")
    stamp(8)
    e("s_nop 7"); e("s_nop 3")
    for x in store_tile(ACA): e(x)
    if opts["fused"]:
        e("s_waitcnt vmcnt(0)")
        stamp(9)
        if opts["er"]:
            e("s_mov_b64 exec, 0xff")
            e(f"buffer_store_dword v{T1}, v{T0}, {srd(SFLG)}, s12 offen offset:128 sc1")
            e("s_mov_b64 exec, -1")
            if opts["er"] == 1:
                e(f"s_cmp_eq_u32 s{S_WAVE}, 3"); e("s_cbranch_scc1 L_end")
                e(f"s_add_u32 s12, s{S_WAVE}, 4")
            else: e(f"s_mov_b32 s12, s{S_WAVE}")
            e("s_movk_i32 s13, 128")
            tail2()
        else: tail()
    else:
        dump_stamps(10)
        e("s_endpgm")

def dump_stamps(n):
    if opts["stamps"]:
        e(f"s_cmp_lg_u32 s{S_WAVE}, 0"); e("s_cbranch_scc1 L_end")
        e("s_waitcnt vmcnt(0)")
        stamp(n-1)
        e("s_waitcnt lgkmcnt(0)")
        e("s_memrealtime s[6:7]")
        e("s_lshl_b32 s68, s2, 6"); e("s_add_u32 s68, s68, 0x8000000"); make_srd(SDBG, 28, 68, 64)
        e("v_mov_b32 v1, 0")
        e("s_getreg_b32 s68, hwreg(HW_REG_XCC_ID)"); e("v_mov_b32 v2, s68"); e(f"buffer_store_dword v2, v1, {srd(SDBG)}, 0 offen offset:56")
        e("s_waitcnt lgkmcnt(0)")
        e("v_mov_b32 v2, s14"); e(f"buffer_store_dword v2, v1, {srd(SDBG)}, 0 offen offset:0")
        e("v_mov_b32 v2, s6"); e(f"buffer_store_dword v2, v1, {srd(SDBG)}, 0 offen offset:60")
        for i in range(1, n):
            e(f"s_sub_u32 s68, s{SB+2*i}, s{SB}"); e("v_mov_b32 v2, s68")
            e(f"buffer_store_dword v2, v1, {srd(SDBG)}, 0 offen offset:{4*i}")

def tail():
    lab("L_tail")
    c("================= cross-workgroup reduction =================")
    e("s_barrier")
    e("v_mbcnt_lo_u32_b32 v0, -1, 0"); e("v_mbcnt_hi_u32_b32 v0, -1, v0")
    if not opts["rowmap"]: e(f"s_lshl_b32 s64, s{S_BR}, 4"); e(f"s_add_u32 s64, s64, s{S_B}")
    e(f"s_cmp_lg_u32 s{S_WAVE}, 7"); e("s_cbranch_scc1 L_nopoll")
    if opts["flg"]:
        e("s_mov_b64 exec, 0xff")
        e(f"buffer_store_dword v2, v4, {srd(SFLG)}, 0 offen sc1")
        e(f"s_mov_b32 s{S_CNT}, 0x40000")
        lab("L_poll")
        e(f"buffer_load_dword v3, v1, {srd(SFLG)}, 0 offen sc1")
        e("s_waitcnt vmcnt(0)")
        e("v_cmp_eq_u32 vcc, 1, v3")
        e("s_cmp_eq_u32 vcc_lo, 0xff"); e("s_cbranch_scc1 L_polled")
        if opts["sleep"]: e(f"s_sleep {opts['sleep']}")
        e(f"s_sub_u32 s{S_CNT}, s{S_CNT}, 1"); e(f"s_cmp_lg_u32 s{S_CNT}, 0"); e("s_cbranch_scc1 L_poll")
    else:
        e("s_lshl_b32 s68, s64, 3"); make_srd(SDBG, 26, 68, 4)
        e("v_mov_b32 v1, 0"); e("v_mov_b32 v2, 1")
        e("s_mov_b64 exec, 1")
        e(f"buffer_atomic_add v2, v1, {srd(SDBG)}, 0 offen sc1")
        e(f"s_mov_b32 s{S_CNT}, 0x40000")
        lab("L_poll")
        e(f"buffer_load_dword v3, v1, {srd(SDBG)}, 0 offen sc1")
        e("s_waitcnt vmcnt(0)")
        e("v_readfirstlane_b32 s68, v3")
        e("s_cmp_ge_u32 s68, 8"); e("s_cbranch_scc1 L_polled")
        e(f"s_sleep {opts['sleep']}")
        e(f"s_sub_u32 s{S_CNT}, s{S_CNT}, 1"); e(f"s_cmp_lg_u32 s{S_CNT}, 0"); e("s_cbranch_scc1 L_poll")
    lab("L_polled")
    e("s_mov_b64 exec, -1")
    e("s_barrier")
    e("s_endpgm")
    lab("L_nopoll")
    if opts["rowmap"]: e(f"s_mov_b32 s12, s{S_WAVE}"); reduce_setup2()
    else:
        e(f"s_mul_i32 s66, s{S_HP}, 7"); e(f"s_add_u32 s66, s66, s{S_WAVE}")
        reduce_setup()
    e("s_barrier")
    stamp(10)
    reduce_body(" sc1")
    dump_stamps(12)
    e("s_endpgm")

def reduce_setup2():
    e(f"s_lshl_b32 s68, s{S_BR}, 4"); e(f"s_add_u32 s68, s68, s{S_B}")
    e("s_mul_i32 s68, s68, 458752"); make_srd(SWS, 28, 68, 458752)
    e("s_mov_b32 s68, 0"); make_srd(SOUT, 24, 68, 1835008)
    e("v_lshrrev_b32 v2, 4, v0"); e("v_bfe_u32 v3, v0, 3, 1"); e("v_and_b32 v4, 7, v0")
    e("v_lshlrev_b32 v1, 10, v2"); e("v_lshl_add_u32 v1, v3, 9, v1"); e("v_lshl_add_u32 v1, v4, 4, v1")
    e(f"s_lshr_b32 s69, s{S_HP}, 2"); e("s_mul_i32 s69, s69, 28672"); e(f"s_and_b32 s70, s{S_HP}, 3"); e("s_lshl_b32 s70, s70, 7")
    e("s_lshl_b32 s68, s12, 12"); e("s_add_u32 s68, s68, s69"); e("s_add_u32 s68, s68, s70")
    e("v_mul_u32_u24 v4, 1792, v4"); e("v_lshl_add_u32 v4, v3, 5, v4"); e("v_lshrrev_b32 v3, 1, v2"); e("v_lshl_add_u32 v4, v3, 6, v4")
    e("v_and_b32 v3, 1, v2"); e("v_lshl_add_u32 v2, v3, 4, v4")
    e(f"s_lshl_b32 s72, s{S_B}, 3"); e(f"s_add_u32 s72, s72, s{S_HP}"); e("s_mul_i32 s72, s72, 14336")
    e(f"s_mul_i32 s69, s{S_BR}, 896"); e("s_add_u32 s72, s72, s69"); e("s_lshl_b32 s69, s12, 7"); e("s_add_u32 s72, s72, s69")

def tail2():
    lab("L_tail2")
    c("================= cross-workgroup reduction: rows 8*hp..8*hp+7 of the group's tile, block s12 =================")
    e("v_mbcnt_lo_u32_b32 v0, -1, 0"); e("v_mbcnt_hi_u32_b32 v0, -1, v0")
    e(f"s_lshl_b32 s68, s{S_HP}, 8"); e("s_add_u32 s13, s13, s68")
    e("v_and_b32 v6, 31, v0"); e("v_lshlrev_b32 v6, 2, v6")
    e(f"buffer_load_dword v7, v6, {srd(SFLG)}, s13 offen sc1")
    reduce_setup2()
    e(f"s_mov_b32 s{S_CNT}, 0x40000")
    lab("L_poll2")
    e("s_waitcnt vmcnt(0)")
    e("v_cmp_ne_u32 vcc, 1, v7")
    e("s_cbranch_vccz L_polled2")
    if opts["sleep"]: e(f"s_sleep {opts['sleep']}")
    e(f"buffer_load_dword v7, v6, {srd(SFLG)}, s13 offen sc1")
    e(f"s_sub_u32 s{S_CNT}, s{S_CNT}, 1"); e(f"s_cmp_lg_u32 s{S_CNT}, 0"); e("s_cbranch_scc1 L_poll2")
    lab("L_polled2")
    stamp(10)
    reduce_body(" sc1")
    dump_stamps(12)
    e("s_endpgm")

def loader():
    lab("L_loader")
    c("================= loader waves 4..7 =================")
    S_LW = 76
    VQ, VX, VO, VK, VL, VW, VPF, DUM, VD = 8, 12, 16, 20, 28, 29, 32, 36, 64
    ntk = ["", " nt", " sc1", " sc0 sc1", " sc1 nt", " sc0 sc1 nt", " sc0", " sc0 nt"][opts["nt_kv"]]; ntp = " nt" if opts["nt_pf"] else ""; ntr = " nt" if opts["nt_ring"] else ""
    ntx = " nt" if opts["nt_x"] else ""
    vm = VM()
    e(f"s_sub_u32 s{S_LW}, s{S_WAVE}, 4")
    def q_pf(t):
        ws = [w for w in range(4) if ([-1, opts["pq1"], opts["pq2"], opts["pq3"]][w] == t)]
        if not ws or not (opts["pfq"] & 1): return
        if len(ws) < 4:
            e(f"s_lshl_b32 s68, 1, s{S_LW}"); e(f"s_and_b32 s68, s68, {sum(1 << w for w in ws)}"); e("s_cselect_b64 exec, -1, 0")
        e(f"buffer_load_dword v{DUM}, v{VPF}, {srd(SWQ)}, s7 offen{ntp}"); vm.add("pf")
        if len(ws) < 4: e("s_mov_b64 exec, -1")
    def do_pf():
        c("L2 line prefetch: Wq row (16t+b), x half")
        e("v_lshrrev_b32 v1, 3, v0"); e("v_and_b32 v2, 7, v0"); e("v_lshlrev_b32 v2, 7, v2"); e(f"v_lshl_add_u32 v{VPF}, v1, 17, v2")
        e(f"s_lshl_b32 s68, s{S_LW}, 20"); e(f"s_lshl_b32 s69, s{S_B}, 13"); e("s_add_u32 s68, s68, s69")
        e("s_mov_b32 s7, s68")
        q_pf(-1)
        e("v_and_b32 v1, 31, v0"); e("v_mul_u32_u24 v1, 896, v1"); e("v_lshrrev_b32 v2, 5, v0"); e(f"v_lshl_add_u32 v{VPF+1}, v2, 7, v1")
        e(f"s_mul_i32 s68, s{S_PAIR}, 28672"); e(f"s_lshl_b32 s69, s{S_LW}, 8"); e("s_add_u32 s68, s68, s69")
        if opts["pfq"] & 2: e(f"buffer_load_dword v{DUM}, v{VPF+1}, {srd(SX)}, s68 offen{ntx}"); vm.add("pf")
    if not opts['rf']: do_pf()
    c("K dma patterns")
    S_KV = 77
    def k_setup():
        rest_srds()
        e("v_lshrrev_b32 v1, 5, v0"); e("v_and_b32 v2, 31, v0"); e("v_xor_b32 v3, v2, v1"); e("v_lshlrev_b32 v3, 4, v3")
        e("v_lshl_add_u32 v3, v1, 9, v3")
        for n in range(8): e(f"v_xor_b32 v{VK+n}, {(2*n)<<4}, v3")
        e(f"s_lshl_b32 s{S_KV}, s{S_LW}, 14")
        e(f"v_lshlrev_b32 v{VL}, 4, v0")
    KD = 128
    def k_load(n):
        if DEEP:
            e(f"s_add_u32 s{S_SOFF}, s{S_KV}, {n*1024}")
            e(f"buffer_load_dwordx4 {vr(KD+4*n,4)}, v{VK+n%8}, {srd(SK)}, s{S_SOFF} offen{ntk}"); vm.add(("k", n)); return
        e(f"s_add_u32 s{S_SOFF}, s{S_KV}, {n*1024}"); e(f"s_add_u32 m0, s{S_SOFF}, {KR}"); e("s_nop 0")
        e(f"buffer_load_dwordx4 v{VK+n%8}, {srd(SK)}, s{S_SOFF} offen{ntk} lds"); vm.add("k")
    def v_load(n):
        e(f"s_add_u32 s{S_SOFF}, s{S_KV}, {(n&~3)*1024}")
        e(f"buffer_load_dwordx4 {vr(VD+4*n,4)}, v{VL}, {srd(SV)}, s{S_SOFF} offen offset:{(n&3)*1024}{ntk}"); vm.add(("v", n))
    def wo_pf(lo=0, hi=None):
        if hi is None: hi = opts["ws1"]
        if lo >= hi: return
        mask = sum(1 << l for l in range(56) if lo <= l % 7 < hi)
        e(f"s_mov_b32 exec_lo, {mask & 0xffffffff:#x}"); e(f"s_mov_b32 exec_hi, {mask >> 32:#x}")
        wo_pf0()
        e("s_mov_b64 exec, -1")
    def wo_pf0():
        e(f"s_mul_i32 s68, s{S_B}, 28672"); e(f"s_mul_i32 s69, s{S_LW}, 7168"); e("s_add_u32 s68, s68, s69")
        e(f"v_lshlrev_b32 v6, 7, v0")
        fl = ["", " nt", " sc0 nt", " nt sc1", " sc0 nt sc1", " sc0", " sc1"][opts["wo_fl"]]
        if opts["wo_full"]:
            for i in range(7):
                e(f"buffer_load_dwordx4 {vr(DUM,4)}, v{VL}, {srd(SWO)}, s68 offen{fl}"); vm.add("pf"); e("s_add_u32 s68, s68, 1024")
        else:
            e(f"buffer_load_dword v{DUM}, v6, {srd(SWO)}, s68 offen{fl}"); vm.add("pf")
    miss = [(k_load, n) for n in range(16)] + [(v_load, n) for n in range(16)]
    if opts["pf"]: miss.insert(int(opts["wo_pos"]), (lambda n: wo_pf(), 0))
    def do_miss(cnt):
        for _ in range(cnt):
            if miss: f, n = miss.pop(0); f(n)
    assert opts['rf'] == 1 and not opts['rot']
    if not opts['rf']: do_miss(opts["m_pre"])
    for r in range(4):
        e(f"v_xor_b32 v1, {r<<2}, v0"); e(f"v_lshlrev_b32 v1, 4, v1"); e(f"v_add_u32 v{VQ+r}, {r*7168}, v1")
    e("v_lshrrev_b32 v2, 3, v0"); e("v_mul_u32_u24 v2, 896, v2"); e("v_and_b32 v3, 7, v0"); e("v_lshrrev_b32 v4, 4, v0")
    for n in range(2):
        e(f"v_add_u32 v5, {4*(n&1)}, v4"); e("v_xor_b32 v5, v5, v3"); e("v_lshl_add_u32 v5, v5, 4, v2")
        e(f"v_add_u32 v{VX+n}, {n*6144}, v5")
    S_QB, S_XB, S_LQ, S_LX, S_OB, S_LO = 4, 5, 30, 31, 62, 63
    e(f"s_lshl_b32 s{S_QB}, s{S_LW}, 15")
    e(f"s_lshl_b32 s{S_LQ}, s{S_LW}, 12")
    e(f"s_mul_i32 s{S_XB}, s{S_LW}, 14336")
    e(f"s_lshl_b32 s{S_LX}, s{S_LW}, 11"); e(f"s_add_u32 s{S_LX}, s{S_LX}, {XR}")
    def q_stage(t):
        e(f"s_add_u32 m0, s{S_LQ}, {(t%NSQ)*16384}")
        e(f"s_add_u32 s{S_SOFF}, s{S_QB}, {16*t*8192}")
        for r in range(4):
            off = f" offset:{r*1024}" if r else ""
            e(f"buffer_load_dwordx4 v{VQ+r}, {srd(SWQ)}, s{S_SOFF} offen{off}{ntr} lds"); vm.add(("q", t))
    def x_chunk(X):
        e(f"s_add_u32 m0, s{S_LX}, {(X%NXS)*8192}")
        e(f"s_add_u32 s{S_SOFF}, s{S_XB}, {X*128}")
        for n in range(2):
            off = f" offset:{n*1024}" if n else ""
            e(f"buffer_load_dwordx4 v{VX+n}, {srd(SX)}, s{S_SOFF} offen{off}{ntx} lds"); vm.add(("x", X))
    OSL = [98304, 114688, 131072, 147456, 0, 16384]
    if opts["od"]: OSL += [65536, 81920, 32768, 49152]
    def o_stage(t):
        e(f"s_add_u32 m0, s{S_LQ}, {OSL[t%len(OSL)]}")
        if opts["rot"]:
            if t % 4 == 0 and t:
                e("s_add_u32 s6, s6, 128"); e("s_cmp_eq_u32 s6, 896"); e("s_cselect_b32 s6, 0, s6"); e(f"s_add_u32 s7, s6, s{S_OB}")
            e(f"s_add_u32 s{S_SOFF}, s7, {128*(t%4)*896}")
        else: e(f"s_add_u32 s{S_SOFF}, s{S_OB}, {128*(t%4)*896 + (t//4)*128}")
        nto = " nt" if opts["nt_ringo"] else ""
        for n in range(4):
            off = f" offset:{n*1024}" if n else ""
            if opts["onoload"] == 2 and t > 5: e(f"buffer_load_dwordx4 {vr(128+16*(t%6)+4*n,4)}, v{VO+n}, {srd(SWO)}, s{S_SOFF} offen{off}"); vm.add(("o", t))
            elif opts["onoload"] == 3 and t > 5:
                if n < 2: e(f"buffer_load_dwordx4 v{VO+n}, {srd(SWO)}, s{S_SOFF} offen{off}{nto} lds"); vm.add(("o", t))
            elif not (opts["onoload"] and t > 5): e(f"buffer_load_dwordx4 v{VO+n}, {srd(SWO)}, s{S_SOFF} offen{off}{nto} lds"); vm.add(("o", t))
    RST = [opts["r0"] + opts["rstep"]*i for i in range(opts["nreg"])]
    WR = 128
    rq = list(range(opts["nreg"]))
    def r_load(cnt):
        for _ in range(cnt):
            if not rq: return
            i = rq.pop(0); t = RST[i]
            e(f"s_add_u32 s{S_SOFF}, s{S_OB}, {128*(t%4)*896 + (t//4)*128}")
            for n in range(4):
                off = f" offset:{n*1024}" if n else ""
                e(f"buffer_load_dwordx4 {vr(WR+16*i+4*n,4)}, v{VO+n}, {srd(SWO)}, s{S_SOFF} offen{off}"); vm.add(("r", t))
    def o_fill(t):
        if t not in RST: return o_stage(t)
        i = RST.index(t)
        vm.wait([("r", t)])
        e(f"s_add_u32 s68, s{S_LQ}, {OSL[t%len(OSL)]}"); e(f"v_add_u32 v5, s68, v{VL}")
        for n in range(4): e(f"ds_write_b128 v5, {vr(WR+16*i+4*n,4)} offset:{n*1024}")
    x_chunk(0)
    if opts['rf'] == 2:
        q_stage(0); q_stage(1); do_pf(); q_stage(2); q_stage(3); x_chunk(1); q_stage(4); do_miss(opts["m_pre"])
    else:
        for t in range(min(4, opts["ini"])): q_stage(t)
        k_setup()
        if opts["ini"] >= 4: x_chunk(1)
        if not (DEEP and opts["init4"]) and opts["ini"] == 5: q_stage(4)
        if DEEP and not opts["init4"]:
            if opts['rf'] == 3: do_pf()
            q_stage(5); q_stage(6); q_stage(7); x_chunk(2); x_chunk(3)
        if opts['rf'] == 1: do_pf()
        if opts['rf']: do_miss(opts["m_pre"])
    do_miss(opts["m_post"])
    c("remaining address setup (off the critical path)")
    e("v_lshrrev_b32 v1, 3, v0"); e("v_mul_u32_u24 v1, 896, v1"); e("v_and_b32 v2, 7, v0"); e("v_bfe_u32 v3, v0, 4, 1")
    e("v_lshlrev_b32 v3, 2, v3"); e("v_xor_b32 v2, v2, v3"); e("v_lshl_add_u32 v1, v2, 4, v1")
    for n in range(4): e(f"v_add_u32 v{VO+n}, {n*6144}, v1")
    e(f"s_mul_i32 s{S_OB}, s{S_LW}, 28672")
    if opts["rot"]:
        e(f"s_mul_i32 s6, s{S_B}, 37"); e("s_lshr_b32 s6, s6, 8"); e("s_mul_i32 s6, s6, 7"); e(f"s_sub_u32 s6, s{S_B}, s6")
        e("s_lshl_b32 s6, s6, 7"); e(f"s_add_u32 s7, s6, s{S_OB}")
    e("v_lshrrev_b32 v1, 5, v0"); e("v_and_b32 v2, 31, v0")
    for par in range(2):
        e(f"v_or_b32 v4, {2*par}, v1"); e("v_lshlrev_b32 v4, 2, v4"); e("v_xor_b32 v4, v4, v2"); e("v_lshlrev_b32 v4, 4, v4")
        e("v_lshl_add_u32 v4, v1, 9, v4"); e(f"v_add_u32 v{VW+par}, s{S_KV}, v4")
    def qphase(grp):
        acc = opts["mfirst"]
        BQ = opts["bq"]
        for t in range(0, 29, BQ):
            if t < 28: vm.wait([("q", t), ("q", t+BQ-1), ("x", t//4)])
            elif DEEP: e("s_waitcnt lgkmcnt(0)")
            else:
                while miss and miss[0][0] is k_load: do_miss(1)
                vm.wait(["k"])
            e(f"s_barrier ; B{t}")
            if t == 0 and DEEP and opts["init4"]:
                if grp is not None and opts[f"k{grp}"] < 0: do_miss(16)
                if grp is not None and opts[f"v{grp}"] < 0: do_miss(99)
                q_stage(4); q_stage(5); q_stage(6); q_stage(7); x_chunk(2); x_chunk(3)
            if t == 0 and not DEEP:
                for u in range(opts["ini"], 4): q_stage(u)
                if opts["ini"] < 4: x_chunk(1)
                if opts["ini"] < 5: q_stage(4)
            for u in range(t + NSQ - BQ, t + NSQ):
                if t >= 1 and u < 28: q_stage(u)
            if t >= 4 and t % 4 == 0 and t//4 + NXS - 1 <= 6: x_chunk(t//4 + NXS - 1)
            if DEEP and t == opts["kw_at"]:
                while miss and miss[0][0] is k_load: do_miss(1)
                e(f"s_add_u32 s68, s{S_KV}, {KR}"); e(f"v_add_u32 v1, s68, v{VL}")
                for n in range(16):
                    if n % 4 == 0: vm.wait([("k", n+3)])
                    e(f"ds_write_b128 v1, {vr(KD+4*n,4)} offset:{n*1024}")
            if grp is None:
                acc += BQ * opts["m_rate"] / 100.0
                q_pf(t)
                n = int(acc) if t % opts["mb"] == 0 else 0
                acc -= n; do_miss(n)
                if 28 - opts["rpre"] <= t < 28 and not miss: r_load(1)
            else:
                if t == opts[f"k{grp}"]: do_miss(16)
                if t == opts[f"v{grp}"]: do_miss(99)
        do_miss(99)
        if opts["wt2"] == -3: wo_pf(opts["ws1"], opts["ws2"])
        if not opts["rpos"]: r_load(99)
        for n in range(16):
            if n % 4 == 0: vm.wait([("v", n+3)])
            e(f"ds_write_b128 v{VW+(n&1)}, {vr(VD+4*n,4)} offset:{n*1024}")
    if opts["stag"]:
        c("K/V miss bursts are staggered over batch groups (b&3): each CU streams L2 hits at full rate outside its burst")
        e(f"s_and_b32 s68, s{S_B}, 3")
        for g in range(1, 4): e(f"s_cmp_eq_u32 s68, {g}"); e(f"s_cbranch_scc1 L_qg{g}")
        ops0 = list(vm.ops); miss0 = list(miss)
        for g in range(4):
            lab(f"L_qg{g}")
            vm.ops = list(ops0); miss[:] = miss0
            qphase(g)
            vm.wait(["pf"]); assert not vm.ops, vm.ops
            if g < 3: e("s_branch L_qgdone")
        lab("L_qgdone")
    else: qphase(None)
    e("s_waitcnt lgkmcnt(0)")
    e("s_barrier ; B29")
    if opts["wt2"] == -2: wo_pf(opts["ws1"], opts["ws2"])
    for t in range(0, 4): o_stage(t)
    if opts["rpos"] == 1: r_load(99)
    if opts["wt2"] == -1: wo_pf(opts["ws1"], opts["ws2"])
    if opts["rpos"] == 2: r_load(99)
    BO = opts["bo"]
    for t in range(0, 29, BO):
        if t < 28: vm.wait([("o", t), ("o", t+BO-1)])
        if t in RST or t+BO-1 in RST: e("s_waitcnt lgkmcnt(0)")
        e(f"s_barrier ; B'{t}")
        if t == 0: o_fill(4); o_fill(5)
        if t == 0 and opts["xs"]: e("s_barrier ; X")
        if t == opts["wt2"]: wo_pf(opts["ws1"], opts["ws2"])
        if t == opts["wt3"]: wo_pf(max(opts["ws1"], opts["ws2"]), 7)
        if opts["od"] and BO == 2:
            for u in {0: [], 2: [6, 7], 4: [8, 9, 10, 11], 6: [12, 13, 14, 15]}.get(t, [t + 8, t + 9]):
                if u < 28: o_fill(u)
        elif opts["od"]:
            for u in {1: [6, 7], 2: [], 3: [8, 9, 10], 4: [11, 12], 5: [13, 14]}.get(t, [t + 9] if t else []):
                if u < 28: o_fill(u)
        else:
            for u in range(t + 6 - BO, t + 6):
                if t >= 1 and u < 28: o_fill(u)
        if t == 16 and opts["er"]:
            c("wave 7: all hand-off lines of the group were reset (normally true long ago)")
            e(f"s_cmp_lg_u32 s{S_WAVE}, 7"); e("s_cbranch_scc1 L_rpolled")
            e(f"s_mov_b32 s{S_CNT}, 0x40000")
            lab("L_rpoll")
            e("v_readfirstlane_b32 s68, v3")
            e("s_cmp_ge_u32 s68, 8"); e("s_cbranch_scc1 L_rpolled")
            e("s_sleep 8")
            e(f"buffer_load_dword v3, v1, {srd(SDBG)}, 0 offen sc1"); e("s_waitcnt vmcnt(0)")
            e(f"s_sub_u32 s{S_CNT}, s{S_CNT}, 1"); e(f"s_cmp_lg_u32 s{S_CNT}, 0"); e("s_cbranch_scc1 L_rpoll")
            lab("L_rpolled")
        if t == (9 if opts["er"] else 22) and opts["flg"]:
            e(f"s_cmp_eq_u32 s{S_WAVE}, 7"); e("v_mov_b32 v1, 0"); e("v_mov_b32 v3, 0"); e("s_cselect_b64 exec, 1, 0")
            e(f"buffer_load_dword v3, v1, {srd(SDBG)}, 0 offen sc1"); vm.add("chk")
            e("s_mov_b64 exec, -1")
    if opts["er"]:
        if opts["er"] == 1: e(f"s_mov_b32 s12, s{S_LW}"); e("s_mov_b32 s13, 0")
        else:
            e(f"s_cmp_eq_u32 s{S_WAVE}, 7"); e("s_cbranch_scc1 L_end")
            e(f"s_mov_b32 s12, s{S_WAVE}"); e("s_movk_i32 s13, 128")
        e("s_branch L_tail2")
        return
    if opts["flg"]:
        c("wave 7: all hand-off lines of the group were reset (normally true long ago)")
        e(f"s_cmp_lg_u32 s{S_WAVE}, 7"); e("s_cbranch_scc1 L_tail")
        e(f"s_mov_b32 s{S_CNT}, 0x40000")
        e("s_branch L_rchk")
        lab("L_rpoll")
        e(f"buffer_load_dword v3, v1, {srd(SDBG)}, 0 offen sc1")
        lab("L_rchk")
        e("s_waitcnt vmcnt(0)")
        e("v_readfirstlane_b32 s68, v3")
        e("s_cmp_ge_u32 s68, 8"); e("s_cbranch_scc1 L_rpolled")
        e("s_sleep 8")
        e(f"s_sub_u32 s{S_CNT}, s{S_CNT}, 1"); e(f"s_cmp_lg_u32 s{S_CNT}, 0"); e("s_cbranch_scc1 L_rpoll")
        lab("L_rpolled")
        fs = opts["fstride"]
        e(f"s_lshl_b32 s68, s{S_HP}, {fs}"); e(f"v_lshlrev_b32 v1, {opts['pl']}, v0"); e("v_add_u32 v1, s68, v1")
        e(f"s_lshl_b32 s68, s{S_HP}, {opts['pl']}"); e(f"v_lshlrev_b32 v4, {fs}, v0"); e("v_add_u32 v4, s68, v4")
        e("v_mov_b32 v2, 1")
    e("s_branch L_tail" if opts["fused"] else "s_endpgm")

def reduce_setup():
    e("s_mul_i32 s68, s64, 458752"); make_srd(SWS, 28, 68, 458752)
    e("s_mov_b32 s68, 0"); make_srd(SOUT, 24, 68, 1835008)
    e("v_lshlrev_b32 v1, 4, v0")
    e("s_and_b32 s69, s66, 1"); e("s_lshr_b32 s70, s66, 1")
    e("s_cmp_ge_u32 s70, 14"); e("s_cselect_b32 s71, 1, 0"); e("s_mul_i32 s72, s71, 14"); e("s_sub_u32 s70, s70, s72")
    e("s_and_b32 s72, s64, 15"); e("s_lshr_b32 s73, s64, 4")
    e("s_lshl_b32 s72, s72, 1"); e("s_add_u32 s72, s72, s71"); e("s_mul_i32 s72, s72, 57344")
    e("s_mul_i32 s73, s73, 896"); e("s_add_u32 s72, s72, s73"); e("s_lshl_b32 s70, s70, 6"); e("s_add_u32 s72, s72, s70")
    e("s_lshl_b32 s69, s69, 4"); e("s_add_u32 s72, s72, s69")
    e("v_and_b32 v2, 31, v0"); e("v_mul_u32_u24 v2, 1792, v2"); e("v_lshrrev_b32 v3, 5, v0"); e("v_lshl_add_u32 v2, v3, 5, v2")
    e("s_lshl_b32 s68, s66, 10")

def reduce_body(fl):
    for j in range(8):
        e(f"buffer_load_dwordx4 {vr(8+4*j,4)}, v1, {srd(SWS)}, s68 offen{fl}")
        if j < 7: e("s_add_u32 s68, s68, 57344")
    for j in range(8):
        e(f"s_waitcnt vmcnt({7-j})")
        for i in range(4):
            if j == 0:
                e(f"v_lshlrev_b32 v{40+2*i}, 16, v{8+i}"); e(f"v_and_b32 v{41+2*i}, 0xffff0000, v{8+i}")
            else:
                e(f"v_lshlrev_b32 v4, 16, v{8+4*j+i}"); e(f"v_and_b32 v5, 0xffff0000, v{8+4*j+i}")
                e(f"v_add_f32 v{40+2*i}, v{40+2*i}, v4"); e(f"v_add_f32 v{41+2*i}, v{41+2*i}, v5")
    for i in range(4): e(f"v_cvt_pk_bf16_f32 v{48+i}, v{40+2*i}, v{41+2*i}")
    e(f"buffer_store_dwordx4 v[48:51], v2, {srd(SOUT)}, s72 offen" + ["", " nt", " sc1", " sc0 sc1"][opts["ofl"]])

def reduce_kernel():
    lab("reduce_kernel")
    e("s_cmp_ge_u32 s2, 256"); e("s_cbranch_scc1 R_end")
    e("s_load_dwordx2 s[24:25], s[0:1], 80")
    e("s_load_dwordx2 s[28:29], s[0:1], 96")
    e("v_lshrrev_b32 v1, 6, v0"); e("v_and_b32 v0, 63, v0"); e("s_nop 0"); e("v_readfirstlane_b32 s3, v1")
    e("s_lshr_b32 s64, s2, 3"); e("s_and_b32 s65, s2, 7")
    e("s_mul_i32 s66, s65, 7"); e("s_add_u32 s66, s66, s3")
    e("s_waitcnt lgkmcnt(0)")
    reduce_setup()
    reduce_body("")
    lab("R_end")
    e("s_endpgm")

def kd(name, vg, sg=102):
    return f""".amdhsa_kernel {name}
  .amdhsa_next_free_vgpr {vg}
  .amdhsa_next_free_sgpr {sg}
  .amdhsa_accum_offset {(vg+3)//4*4}
  .amdhsa_group_segment_fixed_size 0
  .amdhsa_kernarg_size 104
  .amdhsa_user_sgpr_count 2
  .amdhsa_user_sgpr_kernarg_segment_ptr 1
  .amdhsa_system_sgpr_workgroup_id_x 1
.end_amdhsa_kernel"""

MK = NAME + "_kernel" if opts["fused"] else "main_kernel"
hdr = "; Fused 2-branch cached-MHA block (Q-proj, attention, out-proj) for gfx950 -- generated by gen/gen.py\n"
if opts["fused"]: hdr += "; @launch grid=(256,1,1) block=(512,1,1) lds=163840\n"
else: hdr += "; @launch kernel=main_kernel grid=(256,1,1) block=(512,1,1) lds=163840\n; @launch kernel=reduce_kernel grid=(256,1,1) block=(448,1,1) lds=0\n"
hdr += '.amdgcn_target "amdgcn-amd-amdhsa--gfx950"\n.text'
out = [hdr, f".globl {MK}", ".p2align 8", f".type {MK},@function"]
main_kernel(); out += L; L.clear()
if not opts["fused"]:
    out += [".globl reduce_kernel", ".p2align 8", ".type reduce_kernel,@function"]
    reduce_kernel(); out += L; L.clear()
out += ['.section .rodata,"a"', ".p2align 6", kd(MK, 256)]
if not opts["fused"]: out += [".p2align 6", kd("reduce_kernel", 56)]
open(sys.argv[1], "w").write("\n".join(out) + "\n")
```
